```python
import torch

def _softmax(x, axis=-1):
    return torch.softmax(x, dim=axis)

def _gelu(x):
    return torch.nn.functional.gelu(x, approximate='tanh')

def _silu(x):
    return torch.nn.functional.silu(x)

def _sigmoid(x):
    return torch.sigmoid(x)

def _layernorm(x, axis=-1, eps=1e-05):
    m = x.mean(dim=axis, keepdim=True)
    v = x.var(dim=axis, keepdim=True, unbiased=False)
    return (x - m) / torch.sqrt(v + eps)

def _scatter_add(tgt, idx, src, axis=0):
    return tgt.clone().index_add_(axis, idx, src)

def _segment_sum(src, seg, n):
    out = torch.zeros((n,) + src.shape[1:], dtype=src.dtype)
    return out.index_add_(0, seg, src)

def _pad(x, pw):
    flat = tuple((v for pair in reversed(pw) for v in pair))
    return torch.nn.functional.pad(x, flat)
kernel_name = 'adaLN_cond__sliding_local_dilated__mixer_s_mlp__prompt'

def setup_inputs():

    _w = lambda a: (lambda t: t.to(torch.bfloat16) if t.is_floating_point() else t)(torch.as_tensor(a))

    def _A_setup():
        B, S, D = (1, 2048, 512)
        return {'x': _w((lambda *s: torch.randn(*s, dtype=torch.bfloat16) * 0.05)(B, S, D)), 'wqkv': _w((lambda *s: torch.randn(*s, dtype=torch.bfloat16) * 0.05)(D, 3 * D)), 'wo': _w((lambda *s: torch.randn(*s, dtype=torch.bfloat16) * 0.05)(D, D))}
    _A_in = _A_setup()

    def _B_setup():
        B, S, D, F = (1, 2048, 512, 1376)
        return {'x': _w((lambda *s: torch.randn(*s, dtype=torch.bfloat16) * 0.05)(B, S, D)), 'w1': _w((lambda *s: torch.randn(*s, dtype=torch.bfloat16) * 3.2)(D, D) * D ** (-0.5)), 'w2': _w((lambda *s: torch.randn(*s, dtype=torch.bfloat16) * 3.2)(D, D) * D ** (-0.5)), 'w3': _w((lambda *s: torch.randn(*s, dtype=torch.bfloat16) * 3.2)(D, F) * D ** (-0.5)), 'w4': _w((lambda *s: torch.randn(*s, dtype=torch.bfloat16) * 3.2)(F, D) * F ** (-0.5))}
    _B_in = _B_setup()
    return {'A_x': _A_in['x'], 'A_wqkv': _A_in['wqkv'], 'A_wo': _A_in['wo'], 'B_x': _B_in['x'], 'B_w1': _B_in['w1'], 'B_w2': _B_in['w2'], 'B_w3': _B_in['w3'], 'B_w4': _B_in['w4'], 'c': _w((lambda *s: torch.randn(*s, dtype=torch.bfloat16) * 0.1)(1, 512) * 8.0), 'w_mod': _w((lambda *s: torch.randn(*s, dtype=torch.bfloat16) * 0.1)(512, 6 * 512) * 512 ** (-0.5) * 8.0)}

def reference(A_x, A_wqkv, A_wo, B_x, B_w1, B_w2, B_w3, B_w4, c, w_mod):

    def _A_ref(x, wqkv, wo):
        B, S, D = x.shape
        H = 32
        Dh = D // H
        W, dil = (8, 2)
        qkv = (lambda x, *d: x.permute(*d))((x @ wqkv).reshape(B, S, 3, H, Dh), 2, 0, 3, 1, 4)
        q, k, v = (qkv[0], qkv[1], qkv[2])
        scale = Dh ** (-0.5)
        pos = torch.arange(S)
        off = torch.arange(W) * dil
        idx = pos[:, None] - off[None, :]
        mask = idx >= 0
        idx_c = torch.where(mask, idx, 0).reshape(-1)
        kg = k[:, :, idx_c, :].reshape(B, H, S, W, Dh)
        vg = v[:, :, idx_c, :].reshape(B, H, S, W, Dh)
        logits = torch.einsum('bhsd,bhswd->bhsw', q, kg) * scale
        logits = torch.where(mask[None, None, :, :], logits, -1000000000.0)
        attn = _softmax(logits, axis=-1)
        o = torch.einsum('bhsw,bhswd->bhsd', attn, vg)
        return (lambda x, *d: x.permute(*d))(o, 0, 2, 1, 3).reshape(B, S, D) @ wo

    def _B_ref(x, w1, w2, w3, w4):
        B, S, D = x.shape
        h = _gelu(_layernorm(x, axis=-1) @ w1)
        c = D // 4
        g0 = _pad(h[:, :, 0 * c:1 * c], ((0, 0), (1, 0), (0, 0)))[:, :S, :]
        g1 = _pad(h[:, :, 1 * c:2 * c], ((0, 0), (0, 1), (0, 0)))[:, 1:, :]
        g2 = _pad(h[:, :, 2 * c:3 * c], ((0, 0), (2, 0), (0, 0)))[:, :S, :]
        g3 = _pad(h[:, :, 3 * c:], ((0, 0), (0, 2), (0, 0)))[:, 2:, :]
        hs = torch.concatenate([g0, g1, g2, g3], axis=-1) @ w2
        x1 = x + hs
        h2 = _gelu(_layernorm(x1, axis=-1) @ w3) @ w4
        return x1 + h2
    x = A_x
    mod = (_silu(c) @ w_mod).reshape(c.shape[0], 6, 1, -1)
    sa, ca, ga, sb, cb, gb = (mod[:, 0].clone(), mod[:, 1].clone(), mod[:, 2].clone(), mod[:, 3].clone(), mod[:, 4].clone(), mod[:, 5].clone())
    h = _layernorm(x, axis=-1) * (1 + ca) + sa
    x = x + ga * _A_ref(h, A_wqkv, A_wo)
    h = _layernorm(x, axis=-1) * (1 + cb) + sb
    x = x + gb * _B_ref(h, B_w1, B_w2, B_w3, B_w4)
    return x
```

```python
KNAME = 'adaLN_cond__sliding_local_dilated__mixer_s_mlp__prompt_kernel'
HEADER_COMMENT = open('adaLN_cond__sliding_local_dilated__mixer_s_mlp__prompt.s.ref').read().split('; Override launch')[0]

def kd(name, vgpr, sgpr=102, accum=None):
    if accum is None:
        accum = min(256, (vgpr + 3)//4*4)
    return f""".amdhsa_kernel {name}
  .amdhsa_next_free_vgpr {vgpr}
  .amdhsa_next_free_sgpr {sgpr}
  .amdhsa_accum_offset {accum}
  .amdhsa_group_segment_fixed_size 0
  .amdhsa_kernarg_size 104
  .amdhsa_user_sgpr_count 2
  .amdhsa_user_sgpr_kernarg_segment_ptr 1
  .amdhsa_system_sgpr_workgroup_id_x 1
  .amdhsa_float_denorm_mode_32 3
  .amdhsa_float_denorm_mode_16_64 3
.end_amdhsa_kernel
"""

def single(body, grid, block, lds, vgpr, sgpr=102, accum=None, name=KNAME):
    s = HEADER_COMMENT
    s += f"; @launch grid=({grid},1,1) block=({block},1,1) lds={lds}\n"
    s += '.amdgcn_target "amdgcn-amd-amdhsa--gfx950"\n.text\n'
    s += f".globl {name}\n.p2align 8\n.type {name},@function\n{name}:\n"
    s += body
    s += '\n.section .rodata,"a"\n.p2align 6\n'
    s += kd(name, vgpr, sgpr, accum)
    return s

def multi(kernels, launches):
    s = HEADER_COMMENT
    for (n, g, b, l) in launches:
        s += f"; @launch kernel={n} grid=({g},1,1) block=({b},1,1) lds={l}\n"
    s += '.amdgcn_target "amdgcn-amd-amdhsa--gfx950"\n.text\n'
    for (n, body, v, sg, ac) in kernels:
        s += f".globl {n}\n.p2align 8\n.type {n},@function\n{n}:\n" + body + "\n"
    s += '\n.section .rodata,"a"\n'
    for (n, body, v, sg, ac) in kernels:
        s += ".p2align 6\n" + kd(n, v, sg, ac)
    return s
```

```python
import re

def vr(a, n=1):
    return f"v{a}" if n == 1 else f"v[{a}:{a+n-1}]"
def ar(a, n=1):
    return f"a{a}" if n == 1 else f"a[{a}:{a+n-1}]"
def sr(a, n=1):
    return f"s{a}" if n == 1 else f"s[{a}:{a+n-1}]"

_REG = re.compile(r'^-?\|?(?:abs\()?([vas])(?:(\d+)|\[(\d+):(\d+)\])\)?\|?$')

def regs_of(op):
    op = op.strip()
    if op == 'vcc': return {('s', 106), ('s', 107)}
    if op == 'vcc_lo': return {('s', 106)}
    if op == 'vcc_hi': return {('s', 107)}
    if op == 'exec': return {('s', 126), ('s', 127)}
    if op == 'exec_lo': return {('s', 126)}
    if op == 'exec_hi': return {('s', 127)}
    if op == 'm0': return {('s', 124)}
    m = _REG.match(op)
    if not m: return set()
    k = m.group(1)
    if m.group(2) is not None: return {(k, int(m.group(2)))}
    return {(k, i) for i in range(int(m.group(3)), int(m.group(4)) + 1)}

TRANS = ('v_exp_f32', 'v_log_f32', 'v_rcp_f32', 'v_rsq_f32', 'v_sqrt_f32', 'v_sin_f32', 'v_cos_f32', 'v_rcp_iflag_f32')

class Ins:
    __slots__ = ('text', 'op', 'dst', 'src', 'cls', 'srcc', 'srcab', 'passes', 'dpp', 'data', 'ws', 'lds', 'ssrc')
    def __init__(self, text):
        self.text = text
        t = text.split(';')[0].strip()
        self.dst = set(); self.src = set(); self.srcc = set(); self.srcab = set(); self.data = set()
        self.passes = 0; self.dpp = False; self.ws = 1; self.lds = False
        if t.endswith(':') or t.startswith('.') or not t:
            self.op = ''; self.cls = 'meta'; self.ws = 0
            return
        parts = t.split(None, 1)
        op = parts[0]; self.op = op
        rest = parts[1] if len(parts) > 1 else ''
        ops = []; cur = ''; d = 0
        for ch in rest:
            if ch in '[(': d += 1
            if ch in '])': d -= 1
            if ch == ',' and d == 0:
                ops.append(cur.strip()); cur = ''
            else:
                cur += ch
        if cur.strip(): ops.append(cur.strip())
        mods = ''
        if ops:
            last = ops[-1].split(None, 1)
            ops[-1] = last[0]
            mods = last[1] if len(last) > 1 else ''
        R = [regs_of(o) for o in ops]
        U = lambda l: set().union(*l) if l else set()
        base = re.sub(r'_(e32|e64|dpp|sdwa)$', '', op)
        if op.startswith('v_mfma'):
            self.cls = 'mfma'; self.dst = R[0]; self.srcab = R[1] | R[2]; self.srcc = R[3]; self.src = self.srcab | self.srcc
            self.passes = 8 if '32x32' in op else 4
        elif op.startswith('ds_read') or op.startswith('ds_bpermute') or op.startswith('ds_swizzle'):
            self.cls = 'ds'; self.dst = R[0]; self.src = U(R[1:])
        elif op.startswith('ds_'):
            self.cls = 'ds'; self.src = U(R)
        elif op.startswith('buffer_load') or op.startswith('global_load'):
            self.cls = 'vmem'
            if ' lds' in ' ' + mods:
                self.src = U(R) | {('s', 124)}; self.lds = True
            else:
                self.dst = R[0]; self.src = U(R[1:])
        elif op.startswith('buffer_store') or op.startswith('buffer_atomic'):
            self.cls = 'vmem'; self.src = U(R)
            if 'x4' in op or 'x3' in op: self.data = R[0]
        elif op.startswith('buffer_') or op.startswith('global_'):
            self.cls = 'vmem'; self.src = U(R)
        elif op == 's_nop':
            self.cls = 'salu'; self.ws = int(ops[0], 0) + 1
        elif op.startswith('s_load') or op.startswith('s_mem'):
            self.cls = 'smem'; self.dst = R[0]; self.src = U(R[1:])
        elif op.startswith('s_'):
            self.cls = 'salu'
            if op.startswith('s_cmp') or op.startswith('s_cbranch') or op.startswith('s_bitcmp') or op in ('s_branch', 's_waitcnt', 's_barrier', 's_endpgm', 's_sleep', 's_setprio'):
                self.src = U(R)
            else:
                self.dst = R[0] if R else set(); self.src = U(R[1:])
                if 'saveexec' in op: self.dst = self.dst | regs_of('exec')
        elif op.startswith('v_'):
            self.cls = 'trans' if base in TRANS else 'valu'
            if 'permlane' in op:
                self.cls = 'perm'; self.dst = R[0] | R[1]; self.src = R[0] | R[1]
            elif base.startswith('v_cmpx'):
                self.dst = R[0] | regs_of('exec'); self.src = U(R[1:])
            elif base in ('v_add_co_u32', 'v_sub_co_u32', 'v_addc_co_u32', 'v_subb_co_u32', 'v_subrev_co_u32'):
                self.dst = R[0] | R[1]; self.src = U(R[2:])
            else:
                self.dst = R[0]; self.src = U(R[1:])
                if base.startswith('v_fmac') or base.startswith('v_pk_fmac') or base.startswith('v_dot2c') or base == 'v_writelane_b32':
                    self.src = self.src | R[0]
            if base in ('v_readlane_b32', 'v_readfirstlane_b32'): self.cls = 'rdl'
            if base.startswith('v_dot'): self.cls = 'dot'
            if op.endswith('_dpp') or 'row_' in mods or 'quad_perm' in mods:
                self.dpp = True; self.src = self.src | R[0]
        else:
            raise ValueError('unknown op ' + text)

VALUISH = ('valu', 'trans', 'perm', 'rdl', 'dot')
def isv(s): return {r for r in s if r[0] in 'va'}
def iss(s): return {r for r in s if r[0] == 's'}
EXEC = {('s', 126), ('s', 127)}

def need(p, c):
    n = 0
    pv = p.cls in VALUISH
    cv = c.cls in VALUISH
    if p.cls == 'mfma':
        big = 12 if p.passes == 8 else 8
        if c.cls == 'mfma':
            if p.dst & c.srcab: n = max(n, big)
            if p.dst & c.srcc:
                if not (p.dst == c.srcc and p.passes == c.passes): n = max(n, big - 2)
            if (p.dst & c.dst) and not (p.dst == c.dst and p.dst == c.srcc):
                n = max(n, big - 2)
        elif cv or c.cls in ('vmem', 'ds'):
            if p.dst & (c.src | c.dst): n = max(n, big)
        if cv and (p.srcc & c.dst): n = max(n, 7 if p.passes == 8 else 3)
    if pv:
        if c.cls == 'mfma' and isv(p.dst) & c.src: n = max(n, 3 if p.cls == 'dot' else 2)
        if c.cls == 'mfma' and (p.dst & EXEC): n = max(n, 4)
        if c.dpp and isv(p.dst) & c.src: n = max(n, 2)
        if c.dpp and (p.dst & EXEC): n = max(n, 5)
        if c.cls == 'perm' and isv(p.dst) & c.src: n = max(n, 2)
        if c.cls == 'perm' and (p.dst & EXEC): n = max(n, 4)
        if c.cls == 'rdl' and isv(p.dst) & c.src: n = max(n, 1)
        if c.cls == 'rdl' and (iss(p.dst) & c.src or p.dst & EXEC): n = max(n, 4)
        if cv and iss(p.dst) & c.src: n = max(n, 2)
        if c.cls == 'vmem' and iss(p.dst) & c.src: n = max(n, 5)
        if c.cls in ('salu', 'smem') and iss(p.dst) & c.src: n = max(n, 2)
        if p.cls == 'trans' and (cv or c.cls == 'mfma') and c.cls != 'trans' and p.dst & c.src: n = max(n, 1)
        if p.cls == 'trans' and c.cls in ('vmem', 'ds') and p.dst & c.src: n = max(n, 1)
        if p.cls == 'dot' and p.dst & (c.src | c.dst) and not (c.op == p.op): n = max(n, 3)
    if p.cls == 'vmem' and p.data and (p.data & c.dst): n = max(n, 2)
    if p.cls == 'salu' and ('s', 124) in p.dst and c.lds: n = max(n, 1)
    return n

class Prog:
    def __init__(self):
        self.L = []
        self.vm = 0; self.vm_done = 0
        self.lg = 0; self.lg_done = 0
        self.nlab = 0
    def __call__(self, text):
        i = Ins(text)
        self.L.append(i)
        if i.cls == 'vmem':
            self.vm += 1; return self.vm
        if i.cls == 'ds':
            self.lg += 1; return self.lg
        return None
    def label(self, base='L'):
        self.nlab += 1
        return f"{base}_{self.nlab}"
    def wait(self, vm=None, lg=None):
        parts = []
        if vm is not None and vm > self.vm_done:
            n = min(self.vm - vm, 63); parts.append(f"vmcnt({n})"); self.vm_done = self.vm - n
        if lg is not None and lg > self.lg_done:
            n = min(self.lg - lg, 15); parts.append(f"lgkmcnt({n})"); self.lg_done = self.lg - n
        if parts: self("s_waitcnt " + " ".join(parts))
    def wait_all(self, vm=True, lg=True, force=False):
        if force:
            parts = (["vmcnt(0)"] if vm else []) + (["lgkmcnt(0)"] if lg else [])
            self("s_waitcnt " + " ".join(parts))
            if vm: self.vm_done = self.vm
            if lg: self.lg_done = self.lg
        else:
            self.wait(vm=self.vm if vm else None, lg=self.lg if lg else None)
    def save(self):
        return (self.vm, self.vm_done, self.lg, self.lg_done)
    def restore(self, st):
        self.vm, self.vm_done, self.lg, self.lg_done = st
    def fix_hazards(self):
        out = []
        br = {}
        def scan0(c, idx, dist):
            req = 0
            first = True
            while idx >= 0 and dist < 13:
                p = out[idx]
                if p.cls == 'meta':
                    t = p.text.split(';')[0].strip()
                    if t.endswith(':'):
                        for b in br.get(t[:-1], []):
                            req = max(req, scan0b(c, b, dist))
                else:
                    if p.op in ('s_branch', 's_endpgm'):
                        break
                    req = max(req, need(p, c) - dist)
                    dist += p.ws
                idx -= 1
            return req
        def scan0b(c, idx, dist):
            return scan0(c, idx - 1, dist + 1)
        for c in self.L:
            if c.cls != 'meta':
                req = scan0(c, len(out) - 1, 0)
                if req > 0:
                    out.append(Ins(f"s_nop {req-1}"))
            out.append(c)
            if c.op.startswith('s_cbranch') or c.op == 's_branch':
                br.setdefault(c.text.split(';')[0].split()[1], []).append(len(out) - 1)
        self.L = out
    def text(self):
        return "\n".join(i.text for i in self.L) + "\n"
```

```python
from gen import *

def rest(g):
    p = g.p
    cfg = g.cfg
    E = 236
    OA0, OA1 = SP, SP + 1
    p(f"s_mov_b32 s{OA0}, s{T0}")
    p(f"s_mov_b32 s{OA1}, s{T1}")
    def chk():
        p(f"v_xor_b32 v{E+11}, v{E+1}, v{vTAG}")
        p(f"v_xor_b32 v{E+12}, v{E+3}, v{vTAG}")
        p(f"v_xor_b32 v{E+13}, v{E+7}, v{vTAG}")
        p(f"v_or3_b32 v{E+11}, v{E+11}, v{E+12}, v{E+13}")
        p(f"v_cmp_ne_u32 vcc, 0, v{E+11}")
    g.checked(g.etok, g.eloads, chk)
    p(f"s_lshl_b32 s{SOWN}, 0x11111111, s{WV}")
    p(f"s_mov_b32 s{SOWN+1}, 0")
    p(f"s_lshl_b32 s{T0}, 0x00110011, s{WV}")
    p(f"s_lshr_b32 s{T0}, s{T0}, 1")
    p(f"s_cmp_eq_u32 s{WV}, 0")
    p(f"s_cselect_b32 s{T0}, 0, s{T0}")
    p(f"s_lshl_b32 s{T1}, 0x22002200, s{WV}")
    p(f"s_cmp_eq_u32 s{WV}, 3")
    p(f"s_cselect_b32 s{T1}, 0, s{T1}")
    p(f"s_cselect_b64 {sr(SW3M,2)}, 0, -1")
    p(f"s_or_b32 s{NEED3}, s{T0}, s{T1}")
    p(f"s_or_b32 s{NEED3}, s{NEED3}, s{SOWN}")
    p(f"s_mov_b32 s{NEED3+1}, 0")
    p(f"v_cmp_ne_u32 vcc, s{XCC}, v{E+6}")
    if cfg.get('force_slow'):
        p("s_branch L_slow")
    else:
        p("s_cbranch_vccnz L_slow")
    st = p.save(); ns = g.nstamp
    phases(g, '')
    p.restore(st); g.nstamp = ns
    names = list(cfg.get('stamp_names', []))
    p("L_slow:")
    phases(g, ' sc1')
    if cfg.get('stamps'): cfg['stamp_names'] = names


def phases(g, sc):
    p = g.p
    cfg = g.cfg
    E = 236
    OA0, OA1 = SP, SP + 1
    OP = g.OP
    stop = cfg.get('stop', 6)
    bG = BO if cfg.get('alias') else BG
    bX = BH if cfg.get('alias') else BX
    FW = SP + 2
    MBK = SP + 3
    ACC = 128
    TMP = 144

    def flag_store(base, valreg):
        p(f"s_add_u32 s{T0}, s{FW}, {base}")
        p("s_mov_b64 exec, 1")
        p(f"buffer_store_dwordx2 {vr(valreg,2)}, v{vT3}, {sr(sWS,4)}, s{T0} offen{sc}")
        p("s_mov_b64 exec, -1")

    def flag_poll(base, mask, dst):
        p(f"s_mov_b32 s{T1}, {base}")
        p("s_mov_b32 exec_hi, 0" if mask is None else f"s_mov_b64 exec, {mask}")
        g.poll(lambda: p(f"buffer_load_dwordx2 {vr(dst,2)}, v{vFLP}, {sr(sWS,4)}, s{T1} offen sc1"),
               lambda: p(f"v_cmp_ne_u32 vcc, v{dst+1}, v{vTAG}"))
        p("s_mov_b64 exec, -1")

    def preload_w(second, n=16):
        t = None
        for s in range(n):
            for cb in range(4):
                t = g.tr_frag((4*s+cb)*4, cb, s*4096, second)
        return t

    def vec_read(dst, v):
        t = None
        for cb in range(4):
            t = p(f"ds_read_b128 {vr(dst+4*cb,4)}, v{vMP} offset:{v*256 + cb*64}")
        return t

    def gemm16(aload, bg, cinit=None, na=8):
        tok = {}
        for s in range(na): tok[s] = aload(s)
        for s in range(16):
            p.wait(vm=tok[s])
            for cb in range(4):
                c = vr(ACC+4*cb, 4) if s else ('0' if cinit is None else vr(cinit+4*cb, 4))
                p(f"v_mfma_f32_16x16x32_bf16 {vr(ACC+4*cb,4)}, {ar((4*s+cb)*4,4)}, {vr(AF+4*s,4)}, {c}")
                if cb == 0:
                    if s + na < 16: tok[s+na] = aload(s+na)
                    elif bg and (s % 2 == 0): bg.pop(0)()
        while bg: bg.pop(0)()

    def std_aload(buf):
        def f(s):
            if s % 4 == 0: p(f"s_mov_b32 s{T2}, {buf + (s>>2)*4096}")
            return p(f"buffer_load_dwordx4 {vr(AF+4*s,4)}, v{vAOFF}, {sr(sWS,4)}, s{T2} offen offset:{(s&3)*1024} sc1")
        return f

    def store_units(buf, src):
        p(f"s_add_u32 s{T0}, s{MBK}, {buf}")
        p(f"buffer_store_dwordx4 {vr(src,4)}, v{vAOFF}, {sr(sWS,4)}, s{T0} offen{sc}")
        return p(f"buffer_store_dwordx4 {vr(src+4,4)}, v{vAOFF}, {sr(sWS,4)}, s{T0} offen offset:1024{sc}")

    def psum(dst, src, t, kind, other=None):
        if kind == 'lin':
            p(f"v_pk_add_f32 {vr(t,2)}, {vr(src,2)}, {vr(src+2,2)}")
            for k in range(2, 8): p(f"v_pk_add_f32 {vr(t,2)}, {vr(t,2)}, {vr(src+2*k,2)}")
        else:
            o = src if kind == 'sq' else other
            p(f"v_pk_mul_f32 {vr(t,2)}, {vr(src,2)}, {vr(o,2)}")
            for k in range(1, 8): p(f"v_pk_fma_f32 {vr(t,2)}, {vr(src+2*k,2)}, {vr(o+2*k,2)}, {vr(t,2)}")
        p(f"v_add_f32 v{dst}, v{t}, v{t+1}")

    def light_sync(base, S, nval):
        p(f"v_mov_b32 v{S+3}, v{vTAG}")
        g.allred([S+i for i in range(nval)], [S+4+i for i in range(nval)])
        p(f"s_lshr_b32 s{T0}, s{MBK}, 3")
        p(f"s_add_u32 s{T0}, s{T0}, {base}")
        p("s_mov_b64 exec, 0xffff")
        p(f"buffer_store_dwordx4 {vr(S,4)}, v{vUOFF}, {sr(sWS,4)}, s{T0} offen{sc}")
        p("s_mov_b64 exec, -1")
        p(f"s_mov_b32 s{T1}, {base}")
        def loads():
            p(f"buffer_load_dwordx4 {vr(S+8,4)}, v{vUOFF}, {sr(sWS,4)}, s{T1} offen sc1")
            p(f"buffer_load_dwordx4 {vr(S+12,4)}, v{vUOFF}, {sr(sWS,4)}, s{T1} offen offset:1024 sc1")
        def chk():
            p(f"v_xor_b32 v{S+11}, v{S+11}, v{vTAG}")
            p(f"v_xor_b32 v{S+15}, v{S+15}, v{vTAG}")
            p(f"v_or_b32 v{S+11}, v{S+11}, v{S+15}")
            p(f"v_cmp_ne_u32 vcc, 0, v{S+11}")
        g.poll(loads, chk)
        for i in range(nval): p(f"v_add_f32 v{S+i}, v{S+8+i}, v{S+12+i}")
        g.allred([S+i for i in range(nval)], [S+4+i for i in range(nval)])

    def gelu_consts(var, C):
        p(f"v_rsq_f32 v{C+3}, v{var}")
        p(f"v_mul_f32 v{C+2}, v{var}, v{C+3}")
        p(f"v_mul_f32 v{C+1}, {hexf(K1)}, v{C+3}")
        p(f"v_mul_f32 v{C}, v{C+3}, v{C+3}")
        p(f"v_mul_f32 v{C}, v{C}, v{C+3}")
        p(f"v_mul_f32 v{C}, {hexf(K2)}, v{C}")

    def gelu_pk(src, n, out, C, t):
        P = range(n//2)
        for k in P: p(f"v_pk_mul_f32 {vr(t+2*k,2)}, {vr(src+2*k,2)}, {vr(src+2*k,2)}")
        for k in P: p(f"v_pk_fma_f32 {vr(t+2*k,2)}, {vr(t+2*k,2)}, {vr(C,2)}, {vr(C,2)} op_sel:[0,0,1] op_sel_hi:[1,0,1]")
        for k in P: p(f"v_pk_mul_f32 {vr(t+2*k,2)}, {vr(t+2*k,2)}, {vr(src+2*k,2)}")
        for k in range(n): p(f"v_exp_f32 v{t+k}, v{t+k}")
        for k in P: p(f"v_pk_fma_f32 {vr(t+2*k,2)}, {vr(t+2*k,2)}, {vr(C+2,2)}, {vr(C+2,2)} op_sel:[0,0,0] op_sel_hi:[1,0,0]")
        for k in range(n): p(f"v_rcp_f32 v{t+k}, v{t+k}")
        for k in P: p(f"v_pk_mul_f32 {vr(t+2*k,2)}, {vr(t+2*k,2)}, {vr(src+2*k,2)}")
        for k in P: p(f"v_cvt_pk_bf16_f32 v{out+k}, v{t+2*k}, v{t+2*k+1}")

    p(f"buffer_store_dwordx4 {vr(OP,4)}, v{vT0}, {sr(sWS,4)}, s{OA0} offen{sc}")
    to = p(f"buffer_store_dwordx4 {vr(OP+4,4)}, v{vT0}, {sr(sWS,4)}, s{OA1} offen{sc}")
    p(f"s_mul_i32 s{FW}, s{GRP}, {4*UT}")
    p(f"s_lshl_b32 s{T0}, s{MB}, 5")
    p(f"s_add_u32 s{FW}, s{FW}, s{T0}")
    p(f"s_lshl_b32 s{T0}, s{WV}, 3")
    p(f"s_add_u32 s{FW}, s{FW}, s{T0}")
    p(f"s_lshl_b32 s{MBK}, s{MB}, 11")
    p(f"v_permlane32_swap_b32 v{E}, v{E+2}")
    p(f"v_add_f32 v{E}, v{E}, v{E+2}")
    p(f"v_cvt_pk_bf16_f32 v{E}, v{E}, v{E}")
    p(f"s_cmp_eq_u32 s{WV}, 2")
    p(f"s_cselect_b32 s{T0}, 1.0, 0")
    p(f"v_and_b32 v{E}, s{SMASK}, v{E}")
    p(f"v_add_f32 v{E}, s{T0}, v{E}")
    p(f"v_cvt_pk_bf16_f32 v{E}, v{E}, v{E}")
    p(f"v_and_b32 v{E+2}, 31, v{vLANE}")
    p(f"v_lshrrev_b32 v{E+3}, 5, v{vLANE}")
    p(f"v_lshl_add_u32 v{E+2}, v{E+2}, 1, v{E+3}")
    p(f"v_and_b32 v{E}, s{SMASK}, v{E}")
    p(f"s_lshl_b32 s{T0}, s{WV}, 8")
    p(f"s_add_u32 s{T0}, s{T0}, {L_VEC}")
    p(f"v_lshl_add_u32 v{E+2}, v{E+2}, 2, s{T0}")
    p(f"ds_write_b32 v{E+2}, v{E}")
    for n in (8, 4, 2, 1):
        p(f"v_add_f32_dpp v{E}, v{E}, v{E} row_ror:{n} row_mask:0xf bank_mask:0xf")
    g.allred([E], [E+2])
    p(f"v_mov_b32 v{E+1}, v{vTAG}")
    p(f"v_mov_b32 v{vT3}, 0")
    p.wait_all()
    flag_store(FL1, E)
    p("s_barrier")
    g.stamp('o_pub')
    if stop <= 1: return g.finish()
    g.set_tr('NAT', L_WO)
    p(f"v_mov_b32 v{vT3}, 0")
    p(f"v_lshlrev_b32 v{vMP}, 4, v{vG}")
    p(f"v_add_u32 v{vMP}, {L_VEC}, v{vMP}")
    preload_w(512)
    p(f"v_lshlrev_b32 v{vT0}, 7, v{vROW}")
    p(f"v_lshl_add_u32 v{vT0}, v{vG}, 3, v{vT0}")
    p(f"s_lshl_b32 s{T0}, s{WV}, 11")
    p(f"s_add_u32 s{T0}, s{T0}, {L_XST}")
    p(f"v_add_u32 v{vT0}, s{T0}, v{vT0}")
    tx = None
    for cb in range(4): tx = p(f"ds_read_b64 {vr(X2+4*cb+2,2)}, v{vT0} offset:{cb*32}")
    GA, AV_, SB = TMP, TMP+16, TMP+32
    vec_read(GA, 0); vec_read(AV_, 2); vec_read(SB, 1)
    p.wait(lg=tx)
    for cb in range(4):
        b = X2 + 4*cb
        p(f"v_lshlrev_b32 v{b}, 16, v{b+2}"); p(f"v_and_b32 v{b+1}, s{SMASK}, v{b+2}")
        p(f"v_lshlrev_b32 v{b+2}, 16, v{b+3}"); p(f"v_and_b32 v{b+3}, s{SMASK}, v{b+3}")
    p.wait_all(vm=False)
    FV = 200
    flag_poll(FL1, None, FV)
    g.stamp('p2_go')
    bg = [(lambda i=i: g.dma_group(sW1, vDS, i, L_W1)) for i in range(4)]
    gemm16(std_aload(BO), bg)
    p(f"v_add_f32_dpp v{FV}, v{FV}, v{FV} row_ror:4 row_mask:0xf bank_mask:0xf")
    p(f"v_add_f32_dpp v{FV}, v{FV}, v{FV} row_ror:8 row_mask:0xf bank_mask:0xf")
    p(f"v_mov_b32 v{FV+1}, v{FV}")
    p(f"v_permlane16_swap_b32 v{FV}, v{FV+1}")
    p(f"v_add_f32 v{FV}, v{FV}, v{FV+1}")
    p(f"v_mul_f32 v{FV}, {hexf(1/512)}, v{FV}")
    p(f"v_readlane_b32 s{SSBAR}, v{FV}, 1")
    p(f"v_readlane_b32 s{SABAR}, v{FV}, 2")
    g.stamp('p2_mm')
    for k in range(8):
        p(f"v_pk_fma_f32 {vr(X2+2*k,2)}, {vr(ACC+2*k,2)}, {vr(GA+2*k,2)}, {vr(X2+2*k,2)}")
    S = 204
    psum(S, X2, 220, 'lin'); psum(S+1, X2, 222, 'sq'); psum(S+2, X2, 224, 'dot', AV_)
    light_sync(ST2, S, 3)
    g.stamp('p2_ls')
    p(f"s_mov_b32 s{T0}, {hexf(1/512)}")
    p(f"v_mov_b32 v{S+4}, {hexf(EPS)}")
    p(f"v_mul_f32 v{S}, s{T0}, v{S}")
    p(f"v_mul_f32 v{S+2}, s{T0}, v{S+2}")
    p(f"v_fma_f32 v{S+4}, -v{S}, v{S}, v{S+4}")
    p(f"v_fma_f32 v{S+4}, v{S+1}, s{T0}, v{S+4}")
    p(f"v_rsq_f32 v{S+4}, v{S+4}")
    p(f"v_fma_f32 v{S+2}, -v{S}, s{SABAR}, v{S+2}")
    p(f"v_mul_f32_e64 v{S+5}, -v{S}, v{S+4}")
    p(f"v_fma_f32 v{S+6}, v{S+2}, v{S+4}, s{SSBAR}")
    for k in range(8):
        p(f"v_pk_fma_f32 {vr(H1+2*k,2)}, {vr(X2+2*k,2)}, {vr(S+4,2)}, {vr(S+4,2)} op_sel:[0,0,1] op_sel_hi:[1,0,1]")
    for k in range(8):
        p(f"v_pk_fma_f32 {vr(H1+2*k,2)}, {vr(H1+2*k,2)}, {vr(AV_+2*k,2)}, {vr(SB+2*k,2)}")
    HC = TMP
    for k in range(8):
        p(f"v_pk_add_f32 {vr(HC+2*k,2)}, {vr(H1+2*k,2)}, {vr(S+6,2)} op_sel:[0,0] op_sel_hi:[1,0] neg_lo:[0,1] neg_hi:[0,1]")
    PK = 192
    for k in range(8): p(f"v_cvt_pk_bf16_f32 v{PK+k}, v{HC+2*k}, v{HC+2*k+1}")
    store_units(BH, PK)
    psum(S, HC, 220, 'sq')
    g.allred([S], [S+2])
    p(f"v_mov_b32 v{S+1}, v{vTAG}")
    p(f"s_lshr_b32 s{T0}, s{MB}, 1")
    p(f"s_lshl_b32 s{T0}, s{T0}, 8")
    p(f"s_and_b32 s{T1}, s{MB}, 1")
    p(f"s_lshl_b32 s{T1}, s{T1}, 3")
    p(f"s_add_u32 s{T0}, s{T0}, s{T1}")
    p(f"s_add_u32 s{T0}, s{T0}, {FL2}")
    p.wait_all()
    p("s_mov_b64 exec, 0xffff")
    p(f"buffer_store_dwordx2 {vr(S,2)}, v{vUOFF}, {sr(sWS,4)}, s{T0} offen{sc}")
    p("s_mov_b64 exec, -1")
    p("s_barrier")
    g.stamp('hc_pub')
    if stop <= 2: return g.finish()
    g.set_tr('SPL', L_W1)
    p(f"v_mov_b32 v{vT3}, 0")
    preload_w(2048)
    p.wait_all(vm=False)
    p(f"s_mov_b32 s{T1}, {FL2}")
    def chk2():
        p(f"v_xor_b32 v{S+1}, v{S+1}, v{vTAG}")
        p(f"v_xor_b32 v{S+3}, v{S+3}, v{vTAG}")
        p(f"v_or_b32 v{S+1}, v{S+1}, v{S+3}")
        p(f"v_cmp_ne_u32 vcc, 0, v{S+1}")
    g.poll(lambda: p(f"buffer_load_dwordx4 {vr(S,4)}, v{vUOFF}, {sr(sWS,4)}, s{T1} offen sc1"), chk2)
    g.stamp('p3_go')
    bg = [(lambda i=i: g.dma_group(sW2, vDS, i, L_W2)) for i in range(4)]
    gemm16(std_aload(BH), bg)
    p(f"v_add_f32 v{S}, v{S}, v{S+2}")
    g.allred([S], [S+2])
    p(f"v_mov_b32 v{S+1}, {hexf(EPS)}")
    p(f"v_fmac_f32 v{S+1}, {hexf(1/512)}, v{S}")
    C = 208
    gelu_consts(S+1, C)
    g.stamp('p3_mm')
    gelu_pk(ACC, 16, PK, C, TMP)
    store_units(bG, PK)
    st = p.save()
    LH = p.label('nohalo')
    p(f"s_bitcmp1_b32 s{MB}, 1")
    p(f"s_cselect_b32 s{T0}, 0, 3")
    p(f"s_cselect_b32 s{T1}, -1, 2")
    p("s_mov_b32 exec_lo, 0xc000c000"); p("s_cmov_b32 exec_lo, 0x00030003")
    p(f"s_cmp_lg_u32 s{WV}, s{T0}")
    p(f"s_cbranch_scc1 {LH}")
    p(f"s_lshl_b32 s{T0}, s{GRP}, 1")
    p(f"s_add_u32 s{T0}, s{T0}, s{T1}")
    p(f"s_cmp_ge_u32 s{T0}, 64")
    p(f"s_cbranch_scc1 {LH}")
    p("s_mov_b32 exec_hi, exec_lo")
    p(f"s_lshl_b32 s{T0}, s{T0}, 11")
    p(f"s_lshr_b32 s{T1}, s{MB}, 2")
    p(f"s_lshl_b32 s{T1}, s{T1}, 10")
    p(f"s_add_u32 s{T0}, s{T0}, s{T1}")
    p(f"s_and_b32 s{T1}, s{MB}, 1")
    p(f"s_lshl_b32 s{T1}, s{T1}, 9")
    p(f"s_add_u32 s{T0}, s{T0}, s{T1}")
    p(f"s_add_u32 s{T0}, s{T0}, {HALO}")
    p(f"v_and_b32 v{vT0}, 1, v{vROW}")
    p(f"v_lshlrev_b32 v{vT0}, 4, v{vT0}")
    p(f"v_lshl_add_u32 v{vT0}, v{vG}, 5, v{vT0}")
    for k in range(8):
        p(f"v_mov_b32 v{TMP+2*k}, v{PK+k}")
        p(f"v_mov_b32 v{TMP+2*k+1}, v{vTAG}")
    for k in range(4):
        p(f"buffer_store_dwordx4 {vr(TMP+4*k,4)}, v{vT0}, {sr(sWS,4)}, s{T0} offen offset:{128*k} sc1")
    p("s_mov_b64 exec, -1")
    p("s_waitcnt vmcnt(4)")
    LH2 = p.label('halodone')
    p(f"s_branch {LH2}")
    p(f"{LH}:")
    p("s_mov_b64 exec, -1")
    p("s_waitcnt vmcnt(0)")
    p(f"{LH2}:")
    p.restore(st)
    p.vm_done = p.vm
    p(f"v_mov_b32 v{S+1}, v{vTAG}")
    flag_store(FL3, S)
    p("s_barrier")
    g.stamp('g_pub')
    if stop <= 3: return g.finish()
    for cb in range(4): p(f"v_add_u32 v{vTR+cb}, {L_W2 - L_W1}, v{vTR+cb}")
    preload_w(2048)
    CP, CH = SP + 4, SP + 5
    p(f"s_lshr_b32 s{T0}, s{MB}, 1")
    p(f"s_mul_i32 s{T0}, s{T0}, 704")
    p(f"s_bitcmp1_b32 s{MB}, 0")
    p(f"s_cselect_b32 s{CP}, 384, 0")
    p(f"s_mov_b32 s{CH}, 320"); p(f"s_cmov_b32 s{CH}, 352")
    p(f"s_cmp_eq_u32 s{MB}, 7")
    p(f"s_cselect_b32 s{CP}, 320, s{CP}")
    p(f"s_add_u32 s{CP}, s{CP}, s{T0}")
    p(f"s_add_u32 s{CH}, s{CH}, s{T0}")
    p(f"s_sub_u32 s{CH}, s{CH}, 320")
    p(f"s_cmp_ge_u32 s{MB}, 6")
    p(f"s_cselect_b32 s{CH}, {OOB}, s{CH}")
    p(f"s_mul_i32 s{T0}, s{WV}, 192")
    p(f"v_mov_b32 v{vT2}, s{CP}")
    for j in range(3):
        p(f"v_add_u32 v{vT0}, s{T0}, v{vLANE}")
        if j: p(f"v_add_u32 v{vT0}, {64*j}, v{vT0}")
        p(f"v_mul_u32_u24 v{vT1}, 2979, v{vT0}")
        p(f"v_lshrrev_b32 v{vT1}, 16, v{vT1}")
        p(f"v_mul_u32_u24 v{vD3+j}, 22, v{vT1}")
        p(f"v_sub_u32 v{vT0}, v{vT0}, v{vD3+j}")
        p(f"v_mul_u32_u24 v{vT1}, 2752, v{vT1}")
        p(f"v_lshl_add_u32 v{vT1}, v{vT0}, 4, v{vT1}")
        p(f"v_cmp_le_u32 vcc, 20, v{vT0}")
        p(f"v_mov_b32 v{vD3+j}, s{CH}")
        p(f"v_cndmask_b32 v{vD3+j}, v{vT2}, v{vD3+j}, vcc")
        p(f"v_add_u32 v{vD3+j}, v{vD3+j}, v{vT1}")
        if j: p(f"v_subrev_u32 v{vD3+j}, {1024*j}, v{vD3+j}")
    QA = 200; QM = 60
    p(f"s_cmp_eq_u32 s{WV}, 0")
    p(f"s_mov_b32 s{T0}, {-16384+256}"); p(f"s_cmov_b32 s{T0}, {OOB}")
    p(f"s_cmp_eq_u32 s{WV}, 3")
    p(f"s_mov_b32 s{T1}, {16384-256}"); p(f"s_cmov_b32 s{T1}, {OOB}")
    for q, d in enumerate((-1, 1, -2, 2)):
        p(f"v_add_u32 v{QA+q}, {16*d}, v{vAOFF}")
        if d < 0: p(f"v_cmp_gt_u32 {sr(QM+2*q,2)}, {-d}, v{vROW}")
        else:     p(f"v_cmp_le_u32 {sr(QM+2*q,2)}, {16-d}, v{vROW}")
        p(f"v_add_u32 v{vT0}, s{T0 if d < 0 else T1}, v{QA+q}")
        p(f"v_cndmask_b32 v{QA+q}, v{QA+q}, v{vT0}, {sr(QM+2*q,2)}")
    p.wait_all(vm=False)
    flag_poll(FL3, sr(NEED3,2), S)
    p("s_barrier")
    g.stamp('p4_go')
    st = p.save()
    LN = p.label('nohf')
    HF = SP + 6
    p(f"s_mov_b32 s{HF}, 0")
    p(f"s_and_b32 s{T0}, s{WV}, 1")
    p(f"s_lshr_b32 s{T1}, s{WV}, 1")
    p(f"s_cmp_lg_u32 s{T0}, s{T1}")
    p(f"s_cbranch_scc1 {LN}")
    p(f"s_cmp_eq_u32 s{TT}, 0")
    p(f"s_cbranch_scc1 {LN}")
    p(f"s_cmp_eq_u32 s{TT}, 127")
    p(f"s_cbranch_scc1 {LN}")
    p(f"s_mov_b32 s{HF}, 1")
    p(f"s_lshl_b32 s{T1}, s{GRP}, 1")
    p(f"s_add_u32 s{T1}, s{T1}, s{T0}")
    p(f"s_lshl_b32 s{T1}, s{T1}, 11")
    p(f"s_add_u32 s{T1}, s{T1}, {HALO}")
    HR = TMP
    def hl():
        p(f"buffer_load_dwordx4 {vr(HR,4)}, v{vL16}, {sr(sWS,4)}, s{T1} offen sc1")
        p(f"buffer_load_dwordx4 {vr(HR+4,4)}, v{vL16}, {sr(sWS,4)}, s{T1} offen offset:1024 sc1")
    def hc():
        for k in range(4): p(f"v_xor_b32 v{HR+2*k+1}, v{HR+2*k+1}, v{vTAG}")
        p(f"v_or3_b32 v{HR+1}, v{HR+1}, v{HR+3}, v{HR+5}")
        p(f"v_or_b32 v{HR+1}, v{HR+1}, v{HR+7}")
        p(f"v_cmp_ne_u32 vcc, 0, v{HR+1}")
    g.poll(hl, hc, sleep=2)
    p(f"v_and_b32 v{vT0}, 7, v{vLANE}")
    p(f"v_lshlrev_b32 v{vT0}, 4, v{vT0}")
    p(f"v_lshl_add_u32 v{vT0}, v{vG}, 7, v{vT0}")
    p(f"v_and_b32 v{vT1}, 8, v{vLANE}")
    p(f"v_add_u32 v{vT0}, v{vT0}, v{vT1}")
    p(f"s_lshl_b32 s{T0}, s{T0}, 10")
    p(f"s_add_u32 s{T0}, s{T0}, {L_HALO}")
    p(f"v_add_u32 v{vT0}, s{T0}, v{vT0}")
    p(f"ds_write2_b32 v{vT0}, v{HR}, v{HR+2} offset0:0 offset1:1")
    p(f"ds_write2_b32 v{vT0}, v{HR+4}, v{HR+6} offset0:128 offset1:129")
    p(f"v_and_b32 v{vT1}, 1, v{vROW}")
    p(f"v_lshlrev_b32 v{vT1}, 4, v{vT1}")
    p(f"v_lshl_add_u32 v{vT1}, v{vG}, 5, v{vT1}")
    p(f"v_add_u32 v{QA+5}, s{T0}, v{vT1}")
    p(f"v_xor_b32 v{QA+4}, 16, v{QA+5}")
    p("s_waitcnt lgkmcnt(0)")
    p(f"{LN}:")
    p.restore(st)
    def aload4(s):
        if s % 4 == 0: p(f"s_mov_b32 s{T2}, {bG + (s>>2)*4096}")
        return p(f"buffer_load_dwordx4 {vr(AF+4*s,4)}, v{QA+(s>>2)}, {sr(sWS,4)}, s{T2} offen offset:{(s&3)*1024} sc1")
    slab = lambda s: (s*11264 if s < 7 else L_W2 + (s-7)*11264) if s < 13 else (s-13)*11264
    toks = [aload4(s) for s in range(16)]
    for s in range(4): g.dma_w3(s, slab(s))
    p.wait(vm=toks[15])
    st = p.save()
    LP = p.label('nopatch'); LP3 = p.label('patch3')
    p(f"s_cmp_eq_u32 s{HF}, 0")
    p(f"s_cbranch_scc1 {LP}")
    p(f"s_cmp_eq_u32 s{WV}, 3")
    p(f"s_cbranch_scc1 {LP3}")
    for side, lab in ((0, None), (1, LP3)):
        if lab: p(f"{lab}:")
        for hq in range(2):
            q = 2*hq + side
            p(f"s_mov_b64 exec, {sr(QM+2*q,2)}")
            for i in range(4):
                p(f"ds_read_b128 {vr(AF+4*(4*q+i),4)}, v{QA+4+hq} offset:{(4*hq+i)*128}")
        p("s_mov_b64 exec, -1")
        p("s_waitcnt lgkmcnt(0)")
        if side == 0: p(f"s_branch {LP}")
    p(f"{LP}:")
    p.restore(st)
    bg = [(lambda s=s: g.dma_w3(s, slab(s))) for s in range(4, 13)]
    for s in range(16):
        for cb in range(4):
            c = vr(H1+4*cb, 4)
            p(f"v_mfma_f32_16x16x32_bf16 {c}, {ar((4*s+cb)*4,4)}, {vr(AF+4*s,4)}, {c}")
        if bg and s % 2 == 0: bg.pop(0)()
    while bg: bg.pop(0)()
    g.stamp('p4_mm')
    psum(S, H1, 220, 'lin'); psum(S+1, H1, 222, 'sq')
    light_sync(ST4, S, 2)
    g.stamp('p4_ls')
    p(f"s_mov_b32 s{T0}, {hexf(1/512)}")
    p(f"v_mul_f32 v{S}, s{T0}, v{S}")
    XC = TMP
    for k in range(8):
        p(f"v_pk_add_f32 {vr(XC+2*k,2)}, {vr(H1+2*k,2)}, {vr(S,2)} op_sel:[0,0] op_sel_hi:[1,0] neg_lo:[0,1] neg_hi:[0,1]")
    for k in range(8): p(f"v_cvt_pk_bf16_f32 v{PK+k}, v{XC+2*k}, v{XC+2*k+1}")
    p(f"v_mov_b32 v{vRS}, {hexf(EPS)}")
    p(f"v_fma_f32 v{vRS}, -v{S}, v{S}, v{vRS}")
    p(f"v_fma_f32 v{vRS}, v{S+1}, s{T0}, v{vRS}")
    store_units(bX, PK)
    p(f"v_mov_b32 v{S+1}, v{vTAG}")
    p.wait_all()
    flag_store(FL4, S)
    p("s_barrier")
    g.stamp('xc_pub')
    if stop <= 4: return g.finish()
    T3A, T3B = vTR3, vT2
    p(f"v_lshrrev_b32 v{vT0}, 2, v{vLANE}")
    p(f"v_mul_u32_u24 v{vT0}, 352, v{vT0}")
    p(f"v_and_b32 v{vT1}, 3, v{vLANE}")
    p(f"v_lshl_add_u32 v{T3A}, v{vT1}, 3, v{vT0}")
    p(f"v_add_u32 v{vT1}, {56320}, v{T3A}")
    p(f"v_add_u32 v{vT2}, {56320*2}, v{T3A}")
    def w3frag(s, t):
        a = slab(s) + 32*t
        reg, off = (T3A, a) if a < 56320 else ((vT1, a - 56320) if a < 112640 else (vT2, a - 112640))
        d = ((s % 5) * 11 + t) * 4
        p(f"ds_read_b64_tr_b16 {ar(d,2)}, v{reg} offset:{off}")
        return p(f"ds_read_b64_tr_b16 {ar(d+2,2)}, v{reg} offset:{off + 5632}")
    for s in range(5):
        for t in range(11): w3frag(s, t)
    C = 208
    gelu_consts(vRS, C)
    p.wait_all(vm=False)
    flag_poll(FL4, sr(SOWN,2), S)
    p("s_barrier")
    g.stamp('p5_go')
    A5 = 128
    al = std_aload(bX)
    tok = {}
    for s in range(16): tok[s] = al(s)
    t3 = None
    for s in range(13, 16): t3 = g.dma_w3(s, slab(s))
    gaddr = [33792 + 16384*i for i in range(7)] + [0, 16384] + [33792, 33792 + 16384]
    w4q = list(range(11)); w4tok = {}
    def w4dma():
        i = w4q.pop(0)
        w4tok[i] = g.dma_group(sW4, vDS, 0, gaddr[i], rot=False, goff=i*131072)
    ftok = {}
    for s in range(11):
        if s == 8:
            p.wait(vm=t3)
            p.wait_all(vm=False)
            p("s_barrier")
        p.wait(vm=tok[s])
        if s >= 5: p.wait(lg=ftok[s])
        for t in range(11):
            c = vr(A5+4*t, 4) if s else '0'
            p(f"v_mfma_f32_16x16x32_bf16 {vr(A5+4*t,4)}, {ar(((s%5)*11+t)*4,4)}, {vr(AF+4*s,4)}, {c}")
            if t >= 1: ftok[s+5] = w3frag(s+5, t-1)
        ftok[s+5] = w3frag(s+5, 10)
        if s >= 8: w4dma()
    p.wait_all(vm=False)
    p.wait(vm=tok[15])
    p("s_barrier")
    g.stamp('p5_p1')
    US, UH = SP + 4, SP + 5
    p(f"s_lshr_b32 s{T0}, s{MB}, 1")
    p(f"s_mul_i32 s{T0}, s{T0}, {11*1024}")
    p(f"s_add_u32 s{T0}, s{T0}, {BU}")
    p(f"s_bitcmp1_b32 s{MB}, 0")
    p(f"s_cselect_b32 s{US}, {6*1024}, 0")
    p(f"s_mov_b32 s{UH}, {5*1024}"); p(f"s_cmov_b32 s{UH}, {5*1024+8}")
    p(f"s_cmp_eq_u32 s{MB}, 7")
    p(f"s_cselect_b32 s{US}, {5*1024}, s{US}")
    p(f"s_add_u32 s{US}, s{US}, s{T0}")
    p(f"s_add_u32 s{UH}, s{UH}, s{T0}")
    GT = 172; UP = 188
    def tile_mm(t):
        for s in range(11, 16):
            p(f"v_mfma_f32_16x16x32_bf16 {vr(A5+4*t,4)}, {ar(((s%5)*11+t)*4,4)}, {vr(AF+4*s,4)}, {vr(A5+4*t,4)}")
    tile_mm(0); tile_mm(1)
    for q in range(5):
        tile_mm(2*q+2)
        if 2*q + 3 < 11: tile_mm(2*q+3)
        o = UP + 4*(q & 1)
        gelu_pk(A5+8*q, 8, o, C, GT)
        if q == 4: p(f"s_add_u32 s{US}, s{US}, 4096")
        p(f"buffer_store_dwordx4 {vr(o,4)}, v{vUOFF}, {sr(sWS,4)}, s{US} offen offset:{(q&3)*1024}{sc}")
        if q < 3: w4dma(); w4dma()
    st = p.save()
    L6 = p.label('nohalf')
    p(f"s_cmp_ge_u32 s{MB}, 6")
    p(f"s_cbranch_scc1 {L6}")
    gelu_pk(A5+40, 4, UP+8, C, GT)
    p(f"buffer_store_dwordx2 {vr(UP+8,2)}, v{vUOFF}, {sr(sWS,4)}, s{UH} offen{sc}")
    p(f"{L6}:")
    p.restore(st)
    p(f"v_mov_b32 v{S+1}, v{vTAG}")
    p.wait_all(force=True)
    flag_store(FL5, S)
    p("s_barrier")
    g.stamp('u_pub')
    if stop <= 5: return g.finish()
    TB = 236
    for cb in range(4): p(f"v_subrev_u32 v{vTR+cb}, {L_W2}, v{vTR+cb}")
    for cb in range(4): p(f"v_add_u32 v{TB+cb}, {61440}, v{vTR+cb}")
    for cb in range(4): p(f"v_add_u32 v{TB+4+cb}, {122880}, v{vTR+cb}")
    def w4frag(s, cb):
        a = gaddr[s >> 2] + (s & 3)*4096
        reg, off = (vTR+cb, a) if a < 61440 else ((TB+cb, a-61440) if a < 122880 else (TB+4+cb, a-122880))
        d = ((s % 16)*4 + cb) * 4
        p(f"ds_read_b64_tr_b16 {ar(d,2)}, v{reg} offset:{off}")
        return p(f"ds_read_b64_tr_b16 {ar(d+2,2)}, v{reg} offset:{off+2048}")
    for s in range(16):
        for cb in range(4): w4frag(s, cb)
    p.wait_all(vm=False)
    flag_poll(FL5, sr(SOWN,2), S)
    p("s_barrier")
    g.stamp('p6_go')
    def uload(s):
        if s % 4 == 0: p(f"s_mov_b32 s{T2}, {BU + (s>>2)*4096}")
        return p(f"buffer_load_dwordx4 {vr(AF+4*s,4)}, v{vUOFF}, {sr(sWS,4)}, s{T2} offen offset:{(s&3)*1024} sc1")
    NA = 10
    tok = {}; ftok = {}
    for s in range(NA): tok[s] = uload(s)
    w4dma(); w4dma()
    for s in range(43):
        if s == 20:
            p.wait(vm=w4tok[10])
            p("s_barrier")
        p.wait(vm=tok[s])
        if s >= 16: p.wait(lg=ftok[s])
        for cb in range(4):
            c = vr(H1+4*cb, 4)
            p(f"v_mfma_f32_16x16x32_bf16 {c}, {ar(((s%16)*4+cb)*4,4)}, {vr(AF+4*s,4)}, {c}")
            if cb == 0 and s + NA < 43: tok[s+NA] = uload(s+NA)
            if cb >= 1 and s + 16 < 43: ftok[s+16] = w4frag(s+16, cb-1)
        if s + 16 < 43: ftok[s+16] = w4frag(s+16, 3)
        if s == 30: tg = vec_read(AF, 3)
    g.stamp('p6_mm')
    p(f"v_and_b32 v{vT0}, 1, v{vG}")
    p(f"v_lshlrev_b32 v{vT0}, 5, v{vT0}")
    p(f"v_lshrrev_b32 v{vT1}, 1, v{vG}")
    p(f"v_lshl_add_u32 v{vT0}, v{vT1}, 4, v{vT0}")
    p(f"v_lshl_add_u32 v{vT0}, v{vROW}, 10, v{vT0}")
    p(f"s_lshl_b32 s{T0}, s{TT}, 14")
    p(f"s_lshl_b32 s{T1}, s{MB}, 7")
    p(f"s_add_u32 s{T0}, s{T0}, s{T1}")
    p.wait(lg=tg)
    for k in range(8):
        p(f"v_pk_fma_f32 {vr(X2+2*k,2)}, {vr(H1+2*k,2)}, {vr(AF+2*k,2)}, {vr(X2+2*k,2)}")
    for k in range(8): p(f"v_cvt_pk_bf16_f32 v{AF+16+k}, v{X2+2*k}, v{X2+2*k+1}")
    for q in range(2):
        for d in range(2): p(f"v_permlane16_swap_b32 v{AF+16+4*q+d}, v{AF+16+4*q+2+d}")
    p(f"buffer_store_dwordx4 {vr(AF+16,4)}, v{vT0}, {sr(sOUT,4)}, s{T0} offen")
    p(f"buffer_store_dwordx4 {vr(AF+20,4)}, v{vT0}, {sr(sOUT,4)}, s{T0} offen offset:64")
    g.finish()
```

```python
import sys, struct
sys.path.insert(0, 'work')
from dsl import *
from asmlib import single

def f2u(x): return struct.unpack('<I', struct.pack('<f', x))[0]
def hexf(x): return '0x%08x' % f2u(x)

EPOCH = 0x0
XCCG = 0x1000
MODP = 0x4000
HALO = 0x18000
STAMP = 0x100000
BO = 0x200000; BH = 0x400000; BG = 0x600000; BX = 0x800000; BU = 0xA00000
UT = 50176
ST2 = BU + 44032; ST4 = ST2 + 2048; FL2 = ST4 + 2048
FLG = BU + 49152
FL1 = FLG; FL3 = FLG + UT; FL4 = FLG + 2*UT; FL5 = FLG + 3*UT
WS_SIZE = 0x1100000
OOB = 0x80000000
HP = 1056
L_H = 0
L_GST = 0; L_SV = 16384
L_RING = 84480
L_XST = 150016
L_MISC = 158208
L_A0 = L_MISC; L_SA = L_MISC + 2048
L_VEC = L_MISC + 4096
L_HALO = L_MISC
L_WO = 84480; L_W1 = 0; L_W2 = 84480
LDS_SIZE = 163840
sX, sWQ, sWO, sW1, sW2, sW3, sW4, sWM, sC, sOUT, sWS = 4, 8, 12, 16, 20, 24, 28, 32, 36, 40, 44
XS, GQ, MB, GRP, WV, TT, TAG, XCC = 48, 49, 50, 51, 52, 53, 54, 55
SPIN = 56
T0, T1, T2, T3 = 57, 58, 59, 3
SQ = 60
SL = 64
SQ3 = 68
SP = 72
M_PAR, M_C0, M_C1 = 80, 82, 84
SW3M = 86
SWV = 88
SABAR, SSBAR = 92, 93
SMASK = 94
STMP = 96
NEED3 = 98
SOWN = 100
vTID, vLANE, vL16, vG, vROW = 0, 1, 2, 3, 4
vT0, vT1, vT2, vT3 = 5, 6, 7, 8
vTAG = 9
vAOFF = 10
vFLP = 11
vUOFF = 12
vRS = 13
vMP = 14
vSTAMP = 15
X2 = 16
H1 = 32
vDN = 48
vDS = 52
vTR = 56
vD3 = 60
vTR3 = 63
AF = 64

EPS = 1e-5
K1 = -2 * 0.7978845608028654 * 1.4426950408889634
K2 = K1 * 0.044715


class Gen:
    def __init__(self, cfg):
        self.cfg = cfg
        self.p = Prog()
        self.nstamp = 0
        self.stubs = []

    def stamp(self, name):
        if not self.cfg.get('stamps'): return
        p = self.p
        i = self.nstamp; self.nstamp += 1
        self.cfg.setdefault('stamp_names', []).append(name)
        p(f"s_memtime {sr(STMP,2)}")
        p.wait_all(vm=False, lg=True, force=True)
        p(f"v_writelane_b32 v{vSTAMP}, s{STMP}, {i}")

    def poll(self, loads, check, sleep=0):
        p = self.p
        L = p.label('poll')
        p(f"{L}:")
        p(f"s_sub_u32 s{SPIN}, s{SPIN}, 1")
        p("s_cbranch_scc1 L_end")
        loads()
        p.wait_all(vm=True, lg=False, force=True)
        check()
        if sleep:
            D = p.label('pdone')
            p(f"s_cbranch_vccz {D}")
            p(f"s_sleep {sleep}")
            p(f"s_branch {L}")
            p(f"{D}:")
        else:
            p(f"s_cbranch_vccnz {L}")

    def allred(self, regs, tmps, op='v_add_f32'):
        p = self.p
        for sw in ('v_permlane32_swap_b32', 'v_permlane16_swap_b32'):
            for r, t in zip(regs, tmps): p(f"v_mov_b32 v{t}, v{r}")
            for r, t in zip(regs, tmps): p(f"{sw} v{r}, v{t}")
            for r, t in zip(regs, tmps): p(f"{op} v{r}, v{r}, v{t}")

    def dma_group(self, srd, vbase, i, lds_base, rot=True, goff=0):
        p = self.p
        if rot:
            p(f"s_add_u32 m0, s{SL+i}, {lds_base}")
            so = SQ + i
        else:
            p(f"s_add_u32 m0, s{SWV+2}, {lds_base}")
            p(f"s_add_u32 s{T0}, s{SWV+1}, {goff}")
            so = T0
        tok = None
        for j in range(4):
            tok = p(f"buffer_load_dwordx4 v{vbase+j}, {sr(srd,4)}, s{so} offen offset:{1024*j} lds")
        return tok

    def dma_w3(self, s, slab):
        p = self.p
        p(f"s_add_u32 m0, s{SWV}, {slab}")
        p(f"s_mov_b32 s{T0}, {s*32*2752}")
        p(f"buffer_load_dwordx4 v{vD3}, {sr(sW3,4)}, s{T0} offen lds")
        p(f"buffer_load_dwordx4 v{vD3+1}, {sr(sW3,4)}, s{T0} offen offset:1024 lds")
        p(f"s_mov_b64 exec, {sr(SW3M,2)}")
        tok = p(f"buffer_load_dwordx4 v{vD3+2}, {sr(sW3,4)}, s{T0} offen offset:2048 lds")
        p("s_mov_b64 exec, -1")
        return tok

    def dma_qkv(self, s, slot):
        p = self.p
        p(f"s_add_u32 m0, s{SWV}, {L_RING + slot*12288}")
        p(f"s_add_u32 s{T0}, s{SQ3 + (s>>2)}, {(s&3)*98304}")
        tok = None
        for j in range(3):
            tok = p(f"buffer_load_dwordx4 v{vD3}, {sr(sWQ,4)}, s{T0} offen offset:{1024*j} lds")
        return tok

    def set_tr(self, kind, base):
        p = self.p
        p(f"v_bfe_u32 v{vT0}, v{vLANE}, 2, 2")
        if kind == 'NAT':
            p(f"v_lshl_add_u32 v{vT1}, v{vG}, 3, v{vT0}")
            p(f"v_lshrrev_b32 v{vT2}, 1, v{vT0}")
            p(f"v_and_b32 v{vT3}, 1, v{vG}")
            p(f"v_lshl_or_b32 v{vT2}, v{vT3}, 1, v{vT2}")
        else:
            p(f"v_lshl_add_u32 v{vT1}, v{vG}, 2, v{vT0}")
            p(f"v_bfe_u32 v{vT2}, v{vT1}, 1, 2")
        p(f"v_and_b32 v{vT3}, 3, v{vLANE}")
        p(f"v_lshlrev_b32 v{vT3}, 3, v{vT3}")
        p(f"v_lshl_add_u32 v{vT1}, v{vT1}, 7, v{vT3}")
        p(f"v_add_u32 v{vT1}, {base}, v{vT1}")
        for cb in range(4):
            p(f"v_xor_b32 v{vT3}, {cb}, v{vT2}")
            p(f"v_lshl_add_u32 v{vTR+cb}, v{vT3}, 5, v{vT1}")

    def tr_frag(self, dst, cb, off, second):
        p = self.p
        p(f"ds_read_b64_tr_b16 {ar(dst,2)}, v{vTR+cb} offset:{off}")
        return p(f"ds_read_b64_tr_b16 {ar(dst+2,2)}, v{vTR+cb} offset:{off+second}")

    def prologue(self):
        p = self.p
        p("s_cmp_ge_u32 s2, 256")
        p("s_cbranch_scc1 L_end")
        for s, off in ((sWS, 96), (sWM, 72), (sC, 64), (sX, 0), (sWQ, 8), (sWO, 16), (sW1, 32), (sW2, 40), (sW3, 48), (sW4, 56), (sOUT, 80)):
            p(f"s_load_dwordx2 {sr(s,2)}, s[0:1], {off}")
        for s, n in ((sWS, WS_SIZE), (sWM, 512*6144), (sC, 1024), (sX, 2048*1024), (sWQ, 512*3072), (sWO, 512*1024), (sW1, 512*1024),
                     (sW2, 512*1024), (sW3, 512*2752), (sW4, 1376*1024), (sOUT, 2048*1024)):
            p(f"s_mov_b32 s{s+2}, {n}")
            p(f"s_mov_b32 s{s+3}, 0x20000")
        p(f"s_and_b32 s{XS}, s2, 7")
        p(f"s_lshr_b32 s{GQ}, s2, 6")
        p(f"s_bfe_u32 s{MB}, s2, 0x30003")
        p(f"s_lshl_b32 s{GRP}, s{XS}, 2")
        p(f"s_add_u32 s{GRP}, s{GRP}, s{GQ}")
        p(f"v_lshrrev_b32 v{vT0}, 6, v0")
        p(f"v_and_b32 v{vLANE}, 63, v0")
        p(f"v_readfirstlane_b32 s{WV}, v{vT0}")
        p(f"v_lshlrev_b32 v{vL16}, 4, v{vLANE}")
        p(f"v_lshrrev_b32 v{vG}, 4, v{vLANE}")
        p(f"v_and_b32 v{vROW}, 15, v{vLANE}")
        p(f"s_getreg_b32 s{XCC}, hwreg(HW_REG_XCC_ID)")
        p(f"s_and_b32 s{XCC}, s{XCC}, 15")
        p(f"s_mov_b32 s{SPIN}, {self.cfg.get('spin', 200000)}")
        p(f"s_mov_b32 s{SMASK}, 0xffff0000")
        p(f"s_lshl_b32 s{TT}, s{GRP}, 2")
        p(f"s_add_u32 s{TT}, s{TT}, s{WV}")
        p(f"s_mul_i32 s{SWV}, s{WV}, 3072")
        p(f"s_lshl_b32 s{SWV+1}, s{WV}, 15")
        p(f"s_lshl_b32 s{SWV+2}, s{WV}, 12")
        for i in range(4):
            p(f"s_add_u32 s{T0}, s{GQ}, {i}")
            p(f"s_and_b32 s{T0}, s{T0}, 3")
            p(f"s_mul_i32 s{SQ3+i}, s{T0}, {4*98304}")
            p(f"s_lshl_b32 s{SQ+i}, s{T0}, 17")
            p(f"s_add_u32 s{SQ+i}, s{SQ+i}, s{SWV+1}")
            p(f"s_lshl_b32 s{SL+i}, s{T0}, 14")
            p(f"s_add_u32 s{SL+i}, s{SL+i}, s{SWV+2}")
        if self.cfg.get('stamps'):
            p(f"v_mov_b32 v{vSTAMP}, 0")
        p(f"v_mov_b32 v{vT1}, 0")
        p("s_waitcnt lgkmcnt(0)")
        if self.cfg.get('stamps'):
            p(f"s_memrealtime {sr(STMP,2)}")
            p("s_waitcnt lgkmcnt(0)")
            p(f"v_writelane_b32 v{vSTAMP}, s{STMP}, 31")
        self.stamp('start')
        self.tokE = p(f"buffer_load_dword v{vTAG}, v{vT1}, {sr(sWS,4)}, 0 offen sc1")

    def make_tag(self):
        p = self.p
        p.wait(vm=self.tokE)
        p(f"v_readfirstlane_b32 s{TAG}, v{vTAG}")
        p(f"s_mul_i32 s{TAG}, s{TAG}, 0x9E3779B1")
        p(f"s_add_u32 s{TAG}, s{TAG}, 0x7F4A7C15")
        p(f"v_mov_b32 v{vTAG}, s{TAG}")

    def p01(self):
        p = self.p
        XB = 64
        COL0, HALF = SP, SP + 1
        p(f"s_and_b32 s{HALF}, s{GQ}, 1")
        p(f"s_lshr_b32 s{T0}, s{GQ}, 1")
        p(f"s_lshl_b32 s{T1}, s{XS}, 1")
        p(f"s_add_u32 s{T1}, s{T1}, s{T0}")
        p(f"s_lshl_b32 s{T2}, s{T1}, 6")
        p(f"s_lshl_b32 s{T1}, s{T1}, 7")
        p(f"s_add_u32 s{T1}, s{T1}, {1024-64}")
        p(f"s_cmp_lt_u32 s{MB}, 2")
        p(f"s_cselect_b32 s{COL0}, s{T2}, s{T1}")
        p(f"s_lshl_b32 s{T0}, s{MB}, 5")
        p(f"s_add_u32 s{COL0}, s{COL0}, s{T0}")
        st = p.save()
        p(f"s_cmp_ge_u32 s{MB}, 6")
        p("s_cbranch_scc1 L_nogl")
        p(f"v_lshrrev_b32 v{vT0}, 2, v{vLANE}")
        p(f"v_mul_u32_u24 v{vT0}, 6144, v{vT0}")
        p(f"v_and_b32 v{vT1}, 3, v{vLANE}")
        p(f"v_lshl_add_u32 v{vT0}, v{vT1}, 4, v{vT0}")
        p(f"s_lshl_b32 s{T0}, s{HALF}, 2")
        p(f"s_add_u32 s{T0}, s{T0}, s{WV}")
        p(f"s_mul_i32 s{T0}, s{T0}, {64*6144}")
        p(f"s_lshl_b32 s{T1}, s{COL0}, 1")
        p(f"s_add_u32 s{T0}, s{T0}, s{T1}")
        p(f"v_lshlrev_b32 v{vT2}, 1, v0")
        p(f"s_lshl_b32 s{T1}, s{HALF}, 9")
        p(f"buffer_load_ushort v{vT3}, v{vT2}, {sr(sC,4)}, s{T1} offen")
        p(f"s_add_u32 m0, s{SWV+2}, {L_GST}")
        for i in range(4):
            p(f"buffer_load_dwordx4 v{vT0}, {sr(sWM,4)}, s{T0} offen offset:{1024*i} lds")
            if i < 3: p(f"s_add_u32 s{T0}, s{T0}, {16*6144-1024}")
        p("L_nogl:")
        p.restore(st)
        RHO = SP + 2; ROWS = SP + 3; RBASE = SP + 4
        p(f"s_mul_i32 s{RHO}, s{MB}, 5")
        p(f"s_lshr_b32 s{RHO}, s{RHO}, 1")
        p(f"s_lshl_b32 s{RBASE}, s{GRP}, 6")
        p(f"s_add_u32 s{RBASE}, s{RBASE}, s{WV}")
        p(f"s_sub_u32 s{RBASE}, s{RBASE}, 16")
        p(f"s_mov_b32 s{ROWS}, s{RHO}")
        xtok = [None]*20
        def xload(i):
            p(f"s_lshl_b32 s{T0}, s{ROWS}, 2")
            p(f"s_add_u32 s{T0}, s{T0}, s{RBASE}")
            p(f"s_max_i32 s{T0}, s{T0}, 0")
            p(f"s_lshl_b32 s{T0}, s{T0}, 10")
            xtok[i] = p(f"buffer_load_dwordx4 {vr(XB+8*i+4,4)}, v{vL16}, {sr(sX,4)}, s{T0} offen")
            p(f"s_add_u32 s{ROWS}, s{ROWS}, 1")
            p(f"s_cmp_eq_u32 s{ROWS}, 20")
            p(f"s_cselect_b32 s{ROWS}, 0, s{ROWS}")
        NX0 = self.cfg.get('nx0', 6)
        for i in range(NX0): xload(i)
        if self.cfg.get('codepf', True):
            pass
        self.make_tag()
        st = p.save()
        p(f"s_cmp_lg_u32 s{WV}, 3")
        p("s_cbranch_scc1 L_noxcc")
        p(f"s_lshl_b32 s{T0}, s{GRP}, 7")
        p(f"s_lshl_b32 s{T1}, s{MB}, 3")
        p(f"s_add_u32 s{T0}, s{T0}, s{T1}")
        p(f"s_add_u32 s{T0}, s{T0}, {XCCG}")
        p(f"v_mov_b32 v224, s{XCC}")
        p(f"v_mov_b32 v225, s{TAG}")
        p(f"v_mov_b32 v226, 0")
        p("s_mov_b64 exec, 1")
        p(f"buffer_store_dwordx2 v[224:225], v226, {sr(sWS,4)}, s{T0} offen sc1")
        p("s_mov_b64 exec, -1")
        p("L_noxcc:")
        p.restore(st)
        st = p.save()
        p(f"s_cmp_ge_u32 s{MB}, 6")
        p("s_cbranch_scc1 L_nogc")
        p(f"s_waitcnt vmcnt({NX0 + 4})")
        p(f"v_lshlrev_b32 v{vT3}, 16, v{vT3}")
        p(f"v_mul_f32 v224, {hexf(-1.4426950408889634)}, v{vT3}")
        p("v_exp_f32 v224, v224")
        p("v_add_f32 v224, 1.0, v224")
        p("v_rcp_f32 v224, v224")
        p(f"v_mul_f32 v224, v224, v{vT3}")
        p("v_cvt_pk_bf16_f32 v224, v224, v224")
        p(f"ds_write_b16 v{vT2}, v224 offset:{L_SV}")
        p(f"v_bfe_u32 v{vT0}, v{vLANE}, 2, 2")
        p(f"v_lshl_add_u32 v{vT0}, v{vG}, 3, v{vT0}")
        p(f"v_and_b32 v{vT1}, 3, v{vLANE}")
        p(f"v_lshlrev_b32 v{vT1}, 3, v{vT1}")
        p(f"v_lshl_add_u32 v{vT0}, v{vT0}, 6, v{vT1}")
        p(f"s_lshl_b32 s{T0}, s{WV}, 5")
        p(f"v_add_u32 v{vT0}, s{T0}, v{vT0}")
        p(f"v_lshlrev_b32 v{vT1}, 4, v{vG}")
        p(f"s_waitcnt vmcnt({NX0}) lgkmcnt(0)")
        p("s_barrier")
        p(f"s_cmp_ge_u32 s{WV}, 2")
        p("s_cbranch_scc1 L_nogc")
        p.lg_done = p.lg
        toks = []
        for s in range(8):
            p(f"ds_read_b64_tr_b16 {ar(8*s,2)}, v{vT0} offset:{L_GST + s*2048}")
            p(f"ds_read_b64_tr_b16 {ar(8*s+2,2)}, v{vT0} offset:{L_GST + s*2048 + 256}")
            toks.append(p(f"ds_read_b128 {ar(8*s+4,4)}, v{vT1} offset:{L_SV + s*64}"))
        for s in range(8):
            p.wait(lg=toks[s])
            p(f"v_mfma_f32_16x16x32_bf16 v[224:227], {ar(8*s,4)}, {ar(8*s+4,4)}, {'0' if s == 0 else 'v[224:227]'}")
        p(f"v_and_b32 v{vT2}, 1, v{vLANE}")
        p(f"v_cmp_eq_u32 vcc, 1, v{vT2}")
        p(f"v_lshlrev_b32 v{vT2}, 4, v{vT2}")
        p(f"v_lshl_add_u32 v{vT2}, v{vG}, 5, v{vT2}")
        p(f"s_mul_i32 s{T0}, s{HALF}, 24576")
        p(f"s_lshl_b32 s{T1}, s{COL0}, 3")
        p(f"s_add_u32 s{T0}, s{T0}, s{T1}")
        p(f"s_lshl_b32 s{T1}, s{WV}, 7")
        p(f"s_add_u32 s{T0}, s{T0}, s{T1}")
        p(f"s_add_u32 s{T0}, s{T0}, {MODP}")
        p(f"v_mov_b32 v229, s{TAG}")
        p(f"v_mov_b32 v231, s{TAG}")
        p("v_cndmask_b32 v228, v224, v226, vcc")
        p("v_cndmask_b32 v230, v225, v227, vcc")
        p("s_mov_b32 exec_lo, 0x00030003")
        p("s_mov_b32 exec_hi, 0x00030003")
        p(f"buffer_store_dwordx4 v[228:231], v{vT2}, {sr(sWS,4)}, s{T0} offen sc1")
        p("s_mov_b64 exec, -1")
        p("L_nogc:")
        p.restore(st)
        self.stamp('gemv')
        for i in range(NX0, 20): xload(i)
        p(f"v_and_b32 v{vT0}, 1, v{vG}")
        p(f"s_and_b32 s{T0}, s{WV}, 1")
        p(f"s_lshl_b32 s{T0}, s{T0}, 1")
        p(f"v_or_b32 v{vT0}, s{T0}, v{vT0}")
        p(f"v_lshlrev_b32 v{vT0}, 1, v{vT0}")
        p(f"v_and_b32 v{vT1}, 7, v{vLANE}")
        p(f"v_xor_b32 v{vT0}, v{vT0}, v{vT1}")
        p(f"v_lshrrev_b32 v{vT1}, 3, v{vLANE}")
        p(f"v_mul_u32_u24 v{vT1}, 3072, v{vT1}")
        p(f"v_lshl_add_u32 v{vT0}, v{vT0}, 4, v{vT1}")
        p(f"s_mul_i32 s{T0}, s{WV}, {8*3072}")
        p(f"s_lshl_b32 s{T1}, s{MB}, 7")
        p(f"s_add_u32 s{T0}, s{T0}, s{T1}")
        p(f"v_add_u32 v{vD3}, s{T0}, v{vT0}")
        SS, QQ = 16, 36
        wq = list(range(6))
        for i in range(20):
            b = XB + 8*i
            p.wait(vm=xtok[i])
            p(f"v_lshlrev_b32 v{b}, 16, v{b+4}");   p(f"v_and_b32 v{b+1}, s{SMASK}, v{b+4}")
            p(f"v_lshlrev_b32 v{b+2}, 16, v{b+5}"); p(f"v_and_b32 v{b+3}, s{SMASK}, v{b+5}")
            p(f"v_lshlrev_b32 v{b+4}, 16, v{b+6}"); p(f"v_and_b32 v{b+5}, s{SMASK}, v{b+6}")
            p(f"v_lshlrev_b32 v{b+6}, 16, v{b+7}"); p(f"v_and_b32 v{b+7}, s{SMASK}, v{b+7}")
            p(f"v_pk_add_f32 v[224:225], {vr(b,2)}, {vr(b+2,2)}")
            p(f"v_pk_mul_f32 v[228:229], {vr(b,2)}, {vr(b,2)}")
            p(f"v_pk_add_f32 v[226:227], {vr(b+4,2)}, {vr(b+6,2)}")
            p(f"v_pk_fma_f32 v[228:229], {vr(b+2,2)}, {vr(b+2,2)}, v[228:229]")
            p(f"v_pk_add_f32 v[224:225], v[224:225], v[226:227]")
            p(f"v_pk_fma_f32 v[228:229], {vr(b+4,2)}, {vr(b+4,2)}, v[228:229]")
            p(f"v_add_f32 v{SS+i}, v224, v225")
            p(f"v_pk_fma_f32 v[228:229], {vr(b+6,2)}, {vr(b+6,2)}, v[228:229]")
            p(f"v_add_f32 v{QQ+i}, v228, v229")
            if i % 3 == 2 and wq:
                s = wq.pop(0); self.dma_qkv(s, s)
        while wq:
            s = wq.pop(0); self.dma_qkv(s, s)
        self.stamp('ln1')
        for base in (SS, QQ):
            for j in range(10): p(f"v_permlane32_swap_b32 v{base+2*j}, v{base+2*j+1}")
            for j in range(10): p(f"v_add_f32 v{base+2*j}, v{base+2*j}, v{base+2*j+1}")
        for base in (SS, QQ):
            for j in range(5): p(f"v_permlane16_swap_b32 v{base+4*j}, v{base+4*j+2}")
            for j in range(5): p(f"v_add_f32 v{base+4*j}, v{base+4*j}, v{base+4*j+2}")
        for n in (8, 4, 2, 1):
            for base in (SS, QQ):
                for j in range(5):
                    r = base + 4*j
                    p(f"v_add_f32_dpp v{r}, v{r}, v{r} row_ror:{n} row_mask:0xf bank_mask:0xf")
        p(f"v_mov_b32 v224, {hexf(EPS)}")
        p(f"s_mov_b32 s{T0}, {hexf(1/512)}")
        for j in range(5): p(f"v_mul_f32 v{SS+4*j}, s{T0}, v{SS+4*j}")
        for j in range(5): p(f"v_fma_f32 v{SS+4*j+1}, -v{SS+4*j}, v{SS+4*j}, v224")
        for j in range(5): p(f"v_fma_f32 v{QQ+4*j}, v{QQ+4*j}, s{T0}, v{SS+4*j+1}")
        for j in range(5): p(f"v_rsq_f32 v{QQ+4*j}, v{QQ+4*j}")
        for j in range(5): p(f"v_mul_f32_e64 v{SS+4*j}, -v{SS+4*j}, v{QQ+4*j}")
        PP = 74
        p(f"s_mov_b32 s{T2}, s{RHO}")
        def rl(i):
            j, q = divmod(i, 4)
            lane = 16 * (0, 2, 1, 3)[q]
            s = PP + 2*(i % 3)
            p(f"v_readlane_b32 s{s}, v{QQ+4*j}, {lane}")
            p(f"v_readlane_b32 s{s+1}, v{SS+4*j}, {lane}")
        rl(0)
        for i in range(20):
            if i + 1 < 20: rl(i+1)
            s = PP + 2*(i % 3); b = XB + 8*i
            for k in range(4):
                p(f"v_pk_fma_f32 {vr(b+2*k,2)}, {vr(b+2*k,2)}, {sr(s,2)}, {sr(s,2)} op_sel:[0,0,1] op_sel_hi:[1,0,1]")
        self.stamp('ln2')
        p(f"s_lshl_b32 s{T0}, s{GQ}, 4")
        p(f"v_subrev_u32 v{vT0}, s{T0}, v{vLANE}")
        p(f"v_and_b32 v{vT0}, 63, v{vT0}")
        p(f"v_lshlrev_b32 v{vT0}, 4, v{vT0}")
        p(f"s_mul_i32 s{T0}, s{WV}, {HP}")
        p(f"v_add_u32 v{vT0}, s{T0}, v{vT0}")
        p(f"s_mul_i32 s{T2}, s{T2}, {4*HP}")
        HA = 16
        for i in range(20):
            p(f"v_add_u32 v{HA+i}, s{T2}, v{vT0}")
            p(f"s_add_u32 s{T2}, s{T2}, {4*HP}")
            p(f"s_cmp_eq_u32 s{T2}, {80*HP}")
            p(f"s_cselect_b32 s{T2}, 0, s{T2}")
        p(f"v_bfe_u32 v{vT0}, v{vLANE}, 2, 2")
        p(f"v_lshrrev_b32 v{vT1}, 1, v{vT0}")
        p(f"v_and_b32 v{vT2}, 1, v{vG}")
        p(f"v_lshl_or_b32 v{vT1}, v{vT2}, 1, v{vT1}")
        p(f"v_xor_b32 v{vT1}, s{WV}, v{vT1}")
        p(f"v_lshlrev_b32 v{vT1}, 5, v{vT1}")
        p(f"v_lshl_add_u32 v{vT1}, v{vT0}, 7, v{vT1}")
        p(f"v_and_b32 v{vT2}, 3, v{vLANE}")
        p(f"v_lshl_add_u32 v{vT1}, v{vT2}, 3, v{vT1}")
        p(f"v_mul_u32_u24 v{vT2}, 3072, v{vG}")
        p(f"v_add_u32 v{vT1}, v{vT1}, v{vT2}")
        p(f"v_add_u32 v{vTR}, {L_RING}, v{vT1}")
        p(f"v_add_u32 v{vTR+1}, {L_RING + 3*12288}, v{vT1}")
        p(f"v_mul_u32_u24 v{vT0}, {HP}, v{vROW}")
        p(f"v_lshl_add_u32 v{vTR+2}, v{vG}, 4, v{vT0}")
        p(f"v_add_u32 v{vTR+3}, {3*16*HP}, v{vTR+2}")
        p(f"v_lshlrev_b32 v{vT0}, 4, v0")
        G = 224
        def mloads():
            for k, off in enumerate((0, 24576, 4096, 24576+4096)):
                p(f"s_mov_b32 s{T0}, {MODP+off}")
                p(f"buffer_load_dwordx4 {vr(G+4*k,4)}, v{vT0}, {sr(sWS,4)}, s{T0} offen sc1")
        def mcheck():
            for k in range(8): p(f"v_xor_b32 v{G+2*k+1}, v{G+2*k+1}, v{vTAG}")
            p(f"v_or3_b32 v{G+1}, v{G+1}, v{G+3}, v{G+5}")
            p(f"v_or3_b32 v{G+7}, v{G+7}, v{G+9}, v{G+11}")
            p(f"v_or3_b32 v{G+1}, v{G+1}, v{G+13}, v{G+15}")
            p(f"v_or_b32 v{G+1}, v{G+1}, v{G+7}")
            p(f"v_cmp_ne_u32 vcc, 0, v{G+1}")
        self.poll(mloads, mcheck, sleep=self.cfg.get('modsleep', 4))
        self.stamp('mod')
        p(f"v_add_f32 v{G}, v{G}, v{G+4}");     p(f"v_add_f32 v{G+2}, v{G+2}, v{G+6}")
        p(f"v_add_f32 v{G+8}, v{G+8}, v{G+12}"); p(f"v_add_f32 v{G+10}, v{G+10}, v{G+14}")
        p(f"v_cvt_pk_bf16_f32 v{G+1}, v{G}, v{G+2}")
        p(f"v_cvt_pk_bf16_f32 v{G+9}, v{G+8}, v{G+10}")
        p(f"v_lshlrev_b32 v{G}, 16, v{G+1}");   p(f"v_and_b32 v{G+1}, s{SMASK}, v{G+1}")
        p(f"v_lshlrev_b32 v{G+8}, 16, v{G+9}"); p(f"v_and_b32 v{G+9}, s{SMASK}, v{G+9}")
        p(f"v_add_f32 v{G+8}, 1.0, v{G+8}");    p(f"v_add_f32 v{G+9}, 1.0, v{G+9}")
        p(f"v_cvt_pk_bf16_f32 v{G+9}, v{G+8}, v{G+9}")
        p(f"v_lshlrev_b32 v{vT0}, 3, v0")
        p(f"v_add_u32 v{vT0}, {L_MISC}, v{vT0}")
        p(f"v_lshlrev_b32 v{G+8}, 16, v{G+9}"); p(f"v_and_b32 v{G+9}, s{SMASK}, v{G+9}")
        p(f"ds_write_b64 v{vT0}, {vr(G,2)} offset:{L_SA-L_MISC}")
        p(f"ds_write_b64 v{vT0}, {vr(G+8,2)} offset:{L_A0-L_MISC}")
        p(f"v_lshlrev_b32 v{vT1}, 5, v{vLANE}")
        p(f"v_add_u32 v{vT1}, {L_MISC}, v{vT1}")
        p.wait_all()
        p("s_barrier")
        A0, SAr = 224, 232
        p(f"ds_read_b128 {vr(A0,4)}, v{vT1} offset:{L_A0-L_MISC}")
        p(f"ds_read_b128 {vr(A0+4,4)}, v{vT1} offset:{L_A0-L_MISC+16}")
        p(f"ds_read_b128 {vr(SAr,4)}, v{vT1} offset:{L_SA-L_MISC}")
        tA = p(f"ds_read_b128 {vr(SAr+4,4)}, v{vT1} offset:{L_SA-L_MISC+16}")
        def wread(s):
            slot = s % 6
            reg = vTR + slot // 3; off = (slot % 3) * 12288
            t = None
            for m in range(3):
                d = (3*s + m) * 4
                p(f"ds_read_b64_tr_b16 {ar(d,2)}, v{reg} offset:{off + m*1024}")
                t = p(f"ds_read_b64_tr_b16 {ar(d+2,2)}, v{reg} offset:{off + m*1024 + 512}")
            return t
        for s in range(6): wread(s)
        p.wait_all(vm=False)
        p("s_barrier")
        wq = list(range(6, 12)); dtok = {}
        for i in range(20):
            b = XB + 8*i
            for k in range(4):
                p(f"v_pk_fma_f32 {vr(b+2*k,2)}, {vr(b+2*k,2)}, {vr(A0+2*k,2)}, {vr(SAr+2*k,2)}")
            for k in range(4):
                p(f"v_cvt_pk_bf16_f32 v{b+k}, v{b+2*k}, v{b+2*k+1}")
            p(f"ds_write_b128 v{HA+i}, {vr(b,4)}")
            if i % 3 == 0 and wq:
                s = wq.pop(0); dtok[s] = self.dma_qkv(s, s % 6)
        p.wait_all(vm=False)
        p("s_barrier")
        self.stamp('h')
        p(f"v_lshrrev_b32 v{vT0}, 3, v{vLANE}")
        p(f"v_lshlrev_b32 v{vT0}, 10, v{vT0}")
        p(f"s_lshl_b32 s{T0}, s{MB}, 7")
        p(f"v_add_u32 v{vT0}, s{T0}, v{vT0}")
        p(f"v_and_b32 v{vT1}, 7, v{vLANE}")
        p(f"v_lshlrev_b32 v{vT2}, 1, v{vG}")
        p(f"v_xor_b32 v{vT2}, v{vT2}, v{vT1}")
        p(f"v_lshl_add_u32 v{vDS}, v{vT2}, 4, v{vT0}")
        for j in range(1, 4): p(f"v_add_u32 v{vDS+j}, {7168*j}, v{vDS}")
        p(f"v_and_b32 v{vT2}, 1, v{vG}")
        p(f"v_lshlrev_b32 v{vT2}, 1, v{vT2}")
        p(f"v_xor_b32 v{vT2}, v{vT2}, v{vT1}")
        p(f"v_xor_b32 v{vT3}, 4, v{vT2}")
        p(f"v_lshl_add_u32 v{vDN}, v{vT2}, 4, v{vT0}")
        p(f"v_lshl_add_u32 v{vDN+1}, v{vT3}, 4, v{vT0}")
        p(f"v_add_u32 v{vDN+2}, {7168*2}, v{vDN}")
        p(f"v_add_u32 v{vDN+3}, {7168*3}, v{vDN+1}")
        p(f"v_add_u32 v{vDN+1}, {7168}, v{vDN+1}")
        HFB = 64; AQ = 104; AK = 120; AV = 140
        htok = {}
        def hread(s):
            for t in range(5):
                reg = vTR + 2 + (1 if t >= 3 else 0)
                off = (t - (3 if t >= 3 else 0)) * 16 * HP + s * 64
                htok[(s, t)] = p(f"ds_read_b128 {vr(HFB + ((s&1)*5+t)*4, 4)}, v{reg} offset:{off}")
        def kstep(s):
            for t in range(5):
                p.wait(lg=htok[(s, t)])
                hf = vr(HFB + ((s&1)*5+t)*4, 4)
                c = lambda r: '0' if s == 0 else vr(r, 4)
                p(f"v_mfma_f32_16x16x32_bf16 {vr(AK+4*t,4)}, {ar((3*s+1)*4,4)}, {hf}, {c(AK+4*t)}")
                p(f"v_mfma_f32_16x16x32_bf16 {vr(AV+4*t,4)}, {hf}, {ar((3*s+2)*4,4)}, {c(AV+4*t)}")
                if t >= 1:
                    p(f"v_mfma_f32_16x16x32_bf16 {vr(AQ+4*(t-1),4)}, {ar((3*s)*4,4)}, {hf}, {c(AQ+4*(t-1))}")
        hread(0)
        for s in range(16):
            if s % 2 == 0 and 6 <= s + 4 < 16:
                c = s + 4
                p.wait(vm=dtok[c+1])
                p.wait_all(vm=False)
                p("s_barrier")
                if c >= 8 and c + 4 < 16:
                    for k in (c + 4, c + 5): dtok[k] = self.dma_qkv(k, k % 6)
                wread(c); wread(c+1)
            if s == 12:
                p.wait_all(vm=False)
                p("s_barrier")
                for i in range(4): self.dma_group(sWO, vDN, i, L_WO)
                p(f"v_lshl_add_u32 v{vT0}, v{vT1}, 4, v{vT0}")
                p(f"s_lshl_b32 s{T0}, s{TT}, 14")
                p(f"s_lshl_b32 s{T1}, s{WV}, 11")
                p(f"s_add_u32 m0, s{T1}, {L_XST}")
                p(f"buffer_load_dwordx4 v{vT0}, {sr(sX,4)}, s{T0} offen lds")
                p(f"s_add_u32 s{T0}, s{T0}, 7168")
                p(f"buffer_load_dwordx4 v{vT0}, {sr(sX,4)}, s{T0} offen offset:1024 lds")
            if s == self.cfg.get('s_pre', 11): self.early_loads()
            if s + 1 < 16: hread(s+1)
            kstep(s)
        self.stamp('gemm1')
        self.attention(AQ, AK, AV)

    def checked(self, tok, loads, check):
        p = self.p
        R = p.label('retry'); C = p.label('cont')
        p.wait(vm=tok)
        check()
        p(f"s_cbranch_vccnz {R}")
        p(f"{C}:")
        def stub():
            p(f"{R}:")
            p(f"s_sub_u32 s{SPIN}, s{SPIN}, 1")
            p("s_cbranch_scc1 L_end")
            p("s_sleep 2")
            loads()
            p.wait_all(vm=True, lg=False, force=True)
            check()
            p(f"s_cbranch_vccnz {R}")
            p("s_nop 4")
            p(f"s_branch {C}")
        self.stubs.append(stub)

    def early_loads(self):
        p = self.p
        E = 236
        p(f"s_lshl_b32 s{T0}, s{TT}, 14")
        p(f"v_add_u32 v{vAOFF}, s{T0}, v{vL16}")
        p(f"s_mul_i32 s{T0}, s{TT}, {UT}")
        p(f"v_add_u32 v{vUOFF}, s{T0}, v{vL16}")
        p(f"s_mul_i32 s{T1}, s{GRP}, {4*UT}")
        p(f"v_lshlrev_b32 v{vFLP}, 3, v{vLANE}")
        p(f"v_add_u32 v{vFLP}, s{T1}, v{vFLP}")
        p(f"v_lshrrev_b32 v{E+4}, 5, v{vLANE}")
        p(f"v_mul_u32_u24 v{E+4}, 24576, v{E+4}")
        p(f"v_and_b32 v{E+5}, 31, v{vLANE}")
        p(f"v_lshl_add_u32 v{E+4}, v{E+5}, 4, v{E+4}")
        p(f"s_lshl_b32 s{T1}, s{MB}, 9")
        p(f"s_add_u32 s{T1}, s{T1}, s{SWV+2}")
        p(f"s_add_u32 s{T1}, s{T1}, {MODP + 8192}")
        p(f"v_add_u32 v{E+4}, s{T1}, v{E+4}")
        p(f"v_and_b32 v{E+5}, 7, v{vLANE}")
        p(f"v_lshlrev_b32 v{E+5}, 3, v{E+5}")
        p(f"s_lshl_b32 s{T1}, s{GRP}, 7")
        p(f"s_add_u32 s{T1}, s{T1}, {XCCG}")
        p(f"v_add_u32 v{E+5}, s{T1}, v{E+5}")
        def loads():
            p(f"buffer_load_dwordx4 {vr(E,4)}, v{E+4}, {sr(sWS,4)}, 0 offen sc1")
            return p(f"buffer_load_dwordx2 {vr(E+6,2)}, v{E+5}, {sr(sWS,4)}, 0 offen sc1")
        self.eloads = loads
        self.etok = loads()
        if self.cfg.get('preload', True):
            p(f"v_lshlrev_b32 v{E+8}, 7, v{vLANE}")
            p(f"s_mul_i32 s{T1}, s{MB}, {49*128}")
            p(f"s_add_u32 s{T0}, s{T0}, s{T1}")
            p(f"s_add_u32 s{T0}, s{T0}, {BU}")
            p("s_mov_b32 exec_hi, 0x1ffff")
            p(f"buffer_load_dword v{E+9}, v{E+8}, {sr(sWS,4)}, s{T0} offen")
            p("s_mov_b32 exec_hi, -1")
            p(f"v_lshlrev_b32 v{E+8}, 7, v{vROW}")
            p(f"v_lshl_add_u32 v{E+8}, v{vG}, 14, v{E+8}")
            p(f"s_lshl_b32 s{T0}, s{GRP}, 16")
            p(f"s_lshl_b32 s{T1}, s{MB}, 11")
            p(f"s_add_u32 s{T0}, s{T0}, s{T1}")
            p(f"s_lshl_b32 s{T1}, s{WV}, 21")
            p(f"s_add_u32 s{T0}, s{T0}, s{T1}")
            p(f"s_add_u32 s{T0}, s{T0}, {BO}")
            p(f"buffer_load_dword v{E+10}, v{E+8}, {sr(sWS,4)}, s{T0} offen")

    def attention(self, AQ, AK, AV):
        p = self.p
        p(f"v_and_b32 v{vT0}, 1, v{vROW}")
        p(f"v_cmp_eq_u32 {sr(M_PAR,2)}, 1, v{vT0}")
        p(f"v_lshl_add_u32 v{vT1}, v{vG}, 2, v{vT0}")
        p(f"v_cmp_le_u32 {sr(M_C0,2)}, v{vT1}, v{vROW}")
        p(f"v_add_u32 v{vT1}, 2, v{vT1}")
        p(f"v_cmp_le_u32 {sr(M_C1,2)}, v{vT1}, v{vROW}")
        MK = 224
        p(f"v_mov_b32 v{vT2}, 0xffff")
        p(f"v_mov_b32 v{vT3}, s{SMASK}")
        p(f"v_cndmask_b32 v{vT2}, v{vT2}, v{vT3}, {sr(M_PAR,2)}")
        p(f"v_cndmask_b32 v{MK}, 0, v{vT2}, {sr(M_C0,2)}")
        p(f"v_cndmask_b32 v{MK+1}, 0, v{vT2}, {sr(M_C1,2)}")
        p(f"v_xor_b32 v{MK+2}, v{MK}, v{vT2}")
        p(f"v_xor_b32 v{MK+3}, v{MK+1}, v{vT2}")
        CI = 228
        p(f"s_cmp_eq_u32 s{GRP}, 0")
        p(f"s_cselect_b32 s{T0}, {hexf(-1e30)}, 0")
        for r in range(4): p(f"v_mov_b32 v{CI+r}, s{T0}")
        QP, KP, VP = 64, 72, 82
        for t in range(5):
            for d in range(2): p(f"v_cvt_pk_bf16_f32 v{KP+2*t+d}, v{AK+4*t+2*d}, v{AK+4*t+2*d+1}")
        for t in range(4):
            for d in range(2): p(f"v_cvt_pk_bf16_f32 v{QP+2*t+d}, v{AQ+4*t+2*d}, v{AQ+4*t+2*d+1}")
        SC, SPV = 160, 176
        for t in range(4):
            p(f"v_mfma_f32_16x16x16_bf16 {vr(SC+4*t,4)}, {vr(KP+2*(t+1),2)}, {vr(QP+2*t,2)}, 0")
            p(f"v_mfma_f32_16x16x16_bf16 {vr(SPV+4*t,4)}, {vr(KP+2*t,2)}, {vr(QP+2*t,2)}, {vr(CI,4) if t == 0 else '0'}")
        for t in range(5):
            for d in range(2): p(f"v_cvt_pk_bf16_f32 v{VP+2*t+d}, v{AV+4*t+2*d}, v{AV+4*t+2*d+1}")
        AA = 192; MX = 200; TM = 204
        for t in range(4):
            for j in range(2):
                p(f"v_cndmask_b32 v{SC+4*t+2*j}, v{SC+4*t+2*j}, v{SC+4*t+2*j+1}, {sr(M_PAR,2)}")
                p(f"v_cndmask_b32 v{SPV+4*t+2*j}, v{SPV+4*t+2*j}, v{SPV+4*t+2*j+1}, {sr(M_PAR,2)}")
            for j in range(2):
                p(f"v_cndmask_b32 v{AA+2*t+j}, v{SPV+4*t+2*j}, v{SC+4*t+2*j}, {sr((M_C0, M_C1)[j],2)}")
            p(f"v_max_f32 v{MX+t}, v{AA+2*t}, v{AA+2*t+1}")
        self.allred([MX+t for t in range(4)], [TM+t for t in range(4)], 'v_max_f32')
        p(f"s_mov_b32 s{T0}, {hexf(0.25*1.4426950408889634)}")
        for t in range(4):
            for j in range(2): p(f"v_sub_f32 v{AA+2*t+j}, v{AA+2*t+j}, v{MX+t}")
        for k in range(8): p(f"v_mul_f32 v{AA+k}, s{T0}, v{AA+k}")
        for k in range(8): p(f"v_exp_f32 v{AA+k}, v{AA+k}")
        for t in range(4): p(f"v_add_f32 v{MX+t}, v{AA+2*t}, v{AA+2*t+1}")
        self.allred([MX+t for t in range(4)], [TM+t for t in range(4)], 'v_add_f32')
        for t in range(4): p(f"v_rcp_f32 v{MX+t}, v{MX+t}")
        for t in range(4):
            for j in range(2): p(f"v_mul_f32 v{AA+2*t+j}, v{AA+2*t+j}, v{MX+t}")
        for k in range(8): p(f"v_cvt_pk_bf16_f32 v{AA+k}, v{AA+k}, v{AA+k}")
        PC, PP = 160, 168
        for t in range(4):
            for j in range(2):
                p(f"v_and_b32 v{PC+2*t+j}, v{AA+2*t+j}, v{MK+j}")
                p(f"v_and_b32 v{PP+2*t+j}, v{AA+2*t+j}, v{MK+2+j}")
        OA = 176
        for t in range(4):
            p(f"v_mfma_f32_16x16x16_bf16 {vr(OA+4*t,4)}, {vr(VP+2*(t+1),2)}, {vr(PC+2*t,2)}, 0")
        for t in range(4):
            p(f"v_mfma_f32_16x16x16_bf16 {vr(OA+4*t,4)}, {vr(VP+2*t,2)}, {vr(PP+2*t,2)}, {vr(OA+4*t,4)}")
        p(f"v_and_b32 v{vT0}, 1, v{vG}")
        p(f"v_lshlrev_b32 v{vT0}, 14, v{vT0}")
        p(f"v_lshrrev_b32 v{vT1}, 1, v{vG}")
        p(f"v_lshl_add_u32 v{vT0}, v{vT1}, 8, v{vT0}")
        p(f"v_lshl_add_u32 v{vT0}, v{vROW}, 4, v{vT0}")
        p(f"s_lshl_b32 s{T0}, s{GRP}, 16")
        p(f"s_lshl_b32 s{T1}, s{MB}, 11")
        p(f"s_add_u32 s{T0}, s{T0}, s{T1}")
        p(f"s_lshl_b32 s{T1}, s{WV}, 9")
        p(f"s_add_u32 s{T0}, s{T0}, s{T1}")
        p(f"s_add_u32 s{T0}, s{T0}, {BO}")
        p(f"s_add_u32 s{T1}, s{T0}, 32768")
        OP = 192
        for t in range(4):
            for d in range(2): p(f"v_cvt_pk_bf16_f32 v{OP+2*t+d}, v{OA+4*t+2*d}, v{OA+4*t+2*d+1}")
        for q in range(2):
            for d in range(2): p(f"v_permlane16_swap_b32 v{OP+4*q+d}, v{OP+4*q+2+d}")
        self.OP = OP

    def finish(self):
        p = self.p
        st = p.save()
        LE = p.label('noep')
        p(f"s_or_b32 s{T0}, s2, s{WV}")
        p(f"s_cmp_lg_u32 s{T0}, 0")
        p(f"s_cbranch_scc1 {LE}")
        p(f"v_lshrrev_b32 v100, 1, v{vLANE}")
        p(f"v_lshlrev_b32 v100, 7, v100")
        p(f"v_and_b32 v101, 1, v{vLANE}")
        p(f"v_lshl_add_u32 v100, v101, 5, v100")
        p(f"s_mov_b32 s{T1}, {XCCG}")
        def el():
            p(f"buffer_load_dwordx4 v[104:107], v100, {sr(sWS,4)}, s{T1} offen sc1")
            p(f"buffer_load_dwordx4 v[108:111], v100, {sr(sWS,4)}, s{T1} offen offset:16 sc1")
        def ec():
            for k in range(4): p(f"v_xor_b32 v{105+2*k}, v{105+2*k}, v{vTAG}")
            p("v_or3_b32 v105, v105, v107, v109")
            p("v_or_b32 v105, v105, v111")
            p("v_cmp_ne_u32 vcc, 0, v105")
        self.poll(el, ec)
        p("v_mov_b32 v100, 0")
        p("s_mov_b64 exec, 1")
        p(f"buffer_store_dword v{vTAG}, v100, {sr(sWS,4)}, 0 offen sc1")
        p("s_mov_b64 exec, -1")
        p(f"{LE}:")
        p.restore(st)
        if self.cfg.get('stamps'):
            self.stamp('end')
            p(f"s_lshl_b32 s{T0}, s2, 2")
            p(f"s_add_u32 s{T0}, s{T0}, s{WV}")
            p(f"s_lshl_b32 s{T0}, s{T0}, 7")
            p(f"s_add_u32 s{T0}, s{T0}, {STAMP}")
            p(f"v_lshlrev_b32 v{vT0}, 2, v{vLANE}")
            p("s_mov_b32 exec_hi, 0")
            p(f"buffer_store_dword v{vSTAMP}, v{vT0}, {sr(sWS,4)}, s{T0} offen")
        p("s_endpgm")

    def build(self):
        p = self.p
        self.prologue()
        self.p01()
        from gen2 import rest
        rest(self)
        p("L_end:")
        p("s_endpgm")
        for st in self.stubs: st()
        p.fix_hazards()
        return single(p.text(), 256, 256, LDS_SIZE, 512, accum=256)


if __name__ == '__main__':
    import json
    out = sys.argv[1]
    cfg = json.loads(sys.argv[2]) if len(sys.argv) > 2 else {}
    g = Gen(cfg)
    s = g.build()
    open(out, 'w').write(s)
    if cfg.get('stamps'):
        open(out[:-2] + '.names', 'w').write(" ".join(cfg['stamp_names']))
    print(out, len(s), 'bytes', len(g.p.L), 'lines')
```
